```python
import torch

def _softmax(x, axis=-1):
    return torch.softmax(x, dim=axis)
def _gelu(x):
    return torch.nn.functional.gelu(x, approximate="tanh")
def _silu(x):
    return torch.nn.functional.silu(x)
def _sigmoid(x):
    return torch.sigmoid(x)
def _layernorm(x, axis=-1, eps=1e-5):
    m = x.mean(dim=axis, keepdim=True)
    v = x.var(dim=axis, keepdim=True, unbiased=False)
    return (x - m) / torch.sqrt(v + eps)
def _scatter_add(tgt, idx, src, axis=0):
    return tgt.clone().index_add_(axis, idx, src)
def _segment_sum(src, seg, n):
    out = torch.zeros((n,) + src.shape[1:], dtype=src.dtype)
    return out.index_add_(0, seg, src)
def _pad(x, pw):
    flat = tuple(v for pair in reversed(pw) for v in pair)
    return torch.nn.functional.pad(x, flat)

kernel_name = 'sequential_preLN__gqa_block_cached__dense_activation_relu__decode'

def setup_inputs():

    _w = (lambda a: (lambda t: t.to(torch.bfloat16) if t.is_floating_point() else t)(torch.as_tensor(a)))
    def _A_setup():
        B, Sq, D = 2, 1, 640
        Hq, Hkv, Sk, Dh = 32, 32, 4096, 128
        assert Hq % Hkv == 0, (Hq, Hkv)
        return {
            "x": _w((lambda *s: torch.randn(*s, dtype=torch.bfloat16) * 0.05)(B, Sq, D)),
            "k_cache": _w((lambda *s: torch.randn(*s, dtype=torch.bfloat16) * 3.2)(B, Hkv, Sk, Dh)),
            "v_cache": _w((lambda *s: torch.randn(*s, dtype=torch.bfloat16) * 0.4)(B, Hkv, Sk, Dh)),
            "wq": _w((lambda *s: torch.randn(*s, dtype=torch.bfloat16) * 3.2)(D, Hq * Dh) * (D ** -0.5)),
            "wo": _w((lambda *s: torch.randn(*s, dtype=torch.bfloat16) * 0.4)(Hq * Dh, D) * ((Hq * Dh) ** -0.5)),
        }
    _A_in = _A_setup()

    def _B_setup():
        B, S, D, Dff = 2, 1, 640, 1728
        return {
            "x": _w((lambda *s: torch.randn(*s, dtype=torch.bfloat16) * 0.05)(B, S, D)),
            "w1": _w((lambda *s: torch.randn(*s, dtype=torch.bfloat16) * 0.05)(D, Dff)),
            "w2": _w((lambda *s: torch.randn(*s, dtype=torch.bfloat16) * 0.05)(Dff, D)),
        }
    _B_in = _B_setup()

    return {
        "A_x": _A_in["x"],
        "A_k_cache": _A_in["k_cache"],
        "A_v_cache": _A_in["v_cache"],
        "A_wq": _A_in["wq"],
        "A_wo": _A_in["wo"],
        "B_x": _B_in["x"],
        "B_w1": _B_in["w1"],
        "B_w2": _B_in["w2"],
    }

def reference(A_x, A_k_cache, A_v_cache, A_wq, A_wo, B_x, B_w1, B_w2):
    def _A_ref(x, k_cache, v_cache, wq, wo):
        B, Sq, D = x.shape
        Hq, Dh = 32, 128
        Hkv = k_cache.shape[1]
        rep = Hq // Hkv
        q = (lambda x, *d: x.permute(*d))((x @ wq).reshape(B, Sq, Hq, Dh), 0, 2, 1, 3)
        k = (lambda x, n, axis: torch.repeat_interleave(x, n, dim=axis))(k_cache, rep, axis=1)
        v = (lambda x, n, axis: torch.repeat_interleave(x, n, dim=axis))(v_cache, rep, axis=1)
        scores = torch.einsum("bhqd,bhkd->bhqk", q, k) * (Dh ** -0.5)
        p = _softmax(scores, axis=-1)
        o = torch.einsum("bhqk,bhkd->bhqd", p, v)
        return (lambda x, *d: x.permute(*d))(o, 0, 2, 1, 3).reshape(B, Sq, Hq * Dh) @ wo

    def _B_ref(x, w1, w2):
        h = torch.einsum("bsd,df->bsf", x, w1)
        zero = torch.zeros_like(h)
        h = torch.maximum(h, zero)
        return torch.einsum("bsf,fd->bsd", h, w2)

    x = A_x
    h = x + _A_ref(_layernorm(x, axis=-1), A_k_cache, A_v_cache, A_wq, A_wo)
    h2 = h + _B_ref(_layernorm(h, axis=-1), B_w1, B_w2)
    return h2
```

```python
import os
NAME="sequential_preLN__gqa_block_cached__dense_activation_relu__decode"
class G:
    def __init__(s):
        s.L=[]; s.vm=[]; s.lab=0
    def e(s,t): s.L.append("    "+t)
    def lbl(s,t): s.L.append(t+":")
    def newlbl(s,p):
        s.lab+=1; return "L_%s_%d"%(p,s.lab)
    def vmem(s,t,tag=None):
        s.e(t); s.vm.append(tag)
    def wait(s,tag):
        idx=max(i for i,t in enumerate(s.vm) if t==tag)
        n=len(s.vm)-1-idx
        assert n<=63,(tag,n)
        s.e("s_waitcnt vmcnt(%d)"%n)
    def waitall(s):
        s.e("s_waitcnt vmcnt(0)")
import os
g=G(); e=g.e
DBG=os.environ.get("DBG")
SREG=[96,97,100,101,68,69,49,53]
def stamp(k):
    if not DBG: return
    e("s_memrealtime s[98:99]"); e("s_waitcnt lgkmcnt(0)"); e("s_mov_b32 s%d, s98"%SREG[k])
def stamp_out():
    if not DBG: return
    X,Y=[int(t) for t in DBG.split(",")]
    stamp(7)
    e("s_cmp_lg_u32 s41, 0"); e("s_cbranch_scc1 L_end2")
    e("s_mov_b32 s3, 0"); e("s_cmp_eq_u32 s2, %d"%X); e("s_cbranch_scc1 L_so"); e("s_mov_b32 s3, 32"); e("s_cmp_eq_u32 s2, %d"%Y); e("s_cbranch_scc0 L_end2")
    g.lbl("L_so")
    e("v_mov_b32 v9, s3"); e("s_mov_b64 exec, 1")
    for k in range(1,8):
        e("s_sub_u32 s45, s%d, s96"%SREG[k])
        e("v_mov_b32 v10, s45")
        if not (k==0): pass
        e("global_store_dword v9, v10, s[36:37] offset:%d"%(4*k))
        e("s_waitcnt vmcnt(0)")

A0,A1,A2,B0,B1,B2,DD=32,64,96,128,160,192,224
L_LN=0; L_QP=2560; L_Q=L_QP+4096; L_P=L_Q+256; L_ML=L_P+2048; L_YP=L_ML+128; L_T=L_YP+4*768*4
L_SIZE=L_T+8192
W_Y=0; W_ML=0xA0000; W_H=0xA1000; W_Z=0xA4000
OOB=0x80000000
KVFLAG=os.environ.get("KVFLAG"," nt")
def rng(a,n): return "v[%d:%d]"%(a,a+n-1)
def nop(n): e("s_nop %d"%n)
def bf16r(d,a):
    e("v_cvt_pk_bf16_f32 v%d, v%d, v%d"%(d,a,a)); e("v_and_b32 v%d, 0xffff0000, v%d"%(d,d))
def rowred(op,v):
    for r in (8,4,2,1):
        nop(1); e("%s_dpp v%d, v%d, v%d row_ror:%d row_mask:0xf bank_mask:0xf"%(op,v,v,v,r))
def wavered(op,v,half=False):
    rowred(op,v)
    nop(1); e("%s_dpp v%d, v%d, v%d row_bcast:15 row_mask:0xa bank_mask:0xf"%(op,v,v,v))
    if not half:
        nop(1); e("%s_dpp v%d, v%d, v%d row_bcast:31 row_mask:0xc bank_mask:0xf"%(op,v,v,v))
    nop(1)
def tile_loads(area,voff,srd,soffs,tag,flag=""):
    for i in range(8):
        so,io=soffs[i]
        g.vmem("buffer_load_dwordx4 %s, v%d, s[%d:%d], %s offen offset:%d%s"%(rng(area+4*i,4),voff,srd,srd+3,so,io,flag),tag)
def kv_loads(area,srd,quarter,tag):
    tile_loads(area,2,srd,[("s%d"%(60+(quarter*8+i)//4),((quarter*8+i)%4)*1024) for i in range(8)],tag,KVFLAG)
def w_loads(area,voff,srd,sbase,tag):
    tile_loads(area,voff,srd,[("s%d"%(sbase+i),0) for i in range(8)],tag)
PT=[12,16,20]
def tile_mfma(area,aop,D,first):
    def perms(c,t):
        q=c>>1; sel="s44" if c&1 else "s43"
        for r in range(4):
            e("v_perm_b32 v%d, v%d, v%d, %s"%(t+r,area+4*(2*r+1)+q,area+4*(2*r)+q,sel))
    perms(0,PT[0])
    for c in range(8):
        if c+1<8: perms(c+1,PT[(c+1)%3])
        else: nop(1)
        cc="0" if first else rng(D+4*c,4)
        e("v_mfma_f32_16x16x32_bf16 %s, %s, %s, %s"%(rng(D+4*c,4),rng(aop,4),rng(PT[c%3],4),cc))
def d_write(D,vaddr,reg=0):
    nop(7); nop(1)
    e("s_mov_b64 exec, 0xffff")
    for c in range(0,8,2):
        e("ds_write2_b32 v%d, v%d, v%d offset0:%d offset1:%d"%(vaddr,D+4*c+reg,D+4*(c+1)+reg,c,c+1))
    e("s_mov_b64 exec, -1")
def layernorm(vals,half,t):
    n=len(vals); s=t;
    e("v_add_f32 v%d, v%d, v%d"%(s,vals[0],vals[1]))
    for v in vals[2:]: e("v_add_f32 v%d, v%d, v%d"%(s,s,v))
    wavered("v_add_f32",s,half)
    def bc(dst,src):
        if half:
            e("v_readlane_b32 s45, v%d, 31"%src); e("v_readlane_b32 s46, v%d, 63"%src); nop(1)
            e("v_mov_b32 v%d, s45"%dst); e("v_mov_b32 v%d, s46"%(dst+1)); nop(0)
            e("v_cndmask_b32 v%d, v%d, v%d, s[56:57]"%(dst,dst,dst+1))
        else:
            e("v_readlane_b32 s45, v%d, 63"%src); nop(1); e("v_mov_b32 v%d, s45"%dst)
    bc(t+1,s)
    e("v_mul_f32 v%d, 0x3acccccd, v%d"%(t+1,t+1))
    e("v_sub_f32 v%d, v%d, v%d"%(t+2,vals[0],t+1)); e("v_mul_f32 v%d, v%d, v%d"%(s,t+2,t+2))
    for v in vals[1:]:
        e("v_sub_f32 v%d, v%d, v%d"%(t+2,v,t+1)); e("v_fmac_f32 v%d, v%d, v%d"%(s,t+2,t+2))
    wavered("v_add_f32",s,half)
    bc(t+2,s)
    e("v_mul_f32 v%d, 0x3acccccd, v%d"%(t+2,t+2))
    bf16r(t+2,t+2); e("v_add_f32 v%d, 0x3727c5ac, v%d"%(t+2,t+2)); bf16r(t+2,t+2)
    e("v_sqrt_f32 v%d, v%d"%(t+2,t+2)); nop(0); bf16r(t+2,t+2)
    e("v_rcp_f32 v%d, v%d"%(t+3,t+2))
    bf16r(t+1,t+1)
    for v in vals:
        e("v_sub_f32 v%d, v%d, v%d"%(v,v,t+1)); bf16r(v,v)
        e("v_mul_f32 v%d, v%d, v%d"%(t+4,v,t+3))
        e("v_fma_f32 v%d, -v%d, v%d, v%d"%(t+5,t+4,t+2,v))
        e("v_fma_f32 v%d, v%d, v%d, v%d"%(v,t+5,t+3,t+4))
def prologue():
    e("s_cmp_ge_u32 s2, 256"); e("s_cbranch_scc1 L_end2")
    e("s_load_dwordx2 s[32:33], s[0:1], 0")
    e("s_load_dwordx2 s[4:5], s[0:1], 8"); e("s_load_dwordx2 s[8:9], s[0:1], 16")
    e("s_load_dwordx2 s[12:13], s[0:1], 24"); e("s_load_dwordx2 s[16:17], s[0:1], 32")
    e("s_load_dwordx2 s[20:21], s[0:1], 48"); e("s_load_dwordx2 s[24:25], s[0:1], 56")
    e("s_load_dwordx2 s[34:35], s[0:1], 64"); e("s_load_dwordx2 s[36:37], s[0:1], 72")
    e("s_load_dwordx2 s[28:29], s[0:1], 80")
    e("s_and_b32 s39, s2, 7"); e("s_lshl_b32 s39, s39, 2"); e("s_lshr_b32 s3, s2, 3"); e("s_and_b32 s3, s3, 3")
    e("s_or_b32 s39, s39, s3")
    e("s_lshr_b32 s3, s2, 5"); e("s_lshr_b32 s38, s3, 2"); e("s_and_b32 s40, s3, 3")
    e("s_lshl_b32 s42, s39, 2"); e("s_or_b32 s42, s42, s40")
    e("v_lshrrev_b32 v1, 6, v0"); nop(0); e("v_readfirstlane_b32 s41, v1")
    e("v_and_b32 v1, 63, v0"); e("v_lshrrev_b32 v3, 4, v1"); e("v_and_b32 v4, 15, v1")
    e("s_mov_b32 s43, 0x05040100"); e("s_mov_b32 s44, 0x07060302")
    for m in range(8):
        e("s_mov_b32 s%d, %d"%(60+m,4096*m)); e("s_mov_b32 s%d, %d"%(70+m,8192*m))
        e("s_mov_b32 s%d, %d"%(78+m,1280*m)); e("s_mov_b32 s%d, %d"%(86+m,3456*m))
    e("s_mov_b32 s54, 0xcccccccc"); e("s_mov_b32 s55, 0xcccccccc")
    e("s_mov_b32 s56, 0"); e("s_mov_b32 s57, -1")
    e("v_lshlrev_b32 v2, 4, v1"); e("s_lshl_b32 s3, s41, 15"); e("v_add_u32 v2, s3, v2")
    e("s_waitcnt lgkmcnt(0)")
    e("s_lshl_b32 s3, s38, 5"); e("s_add_u32 s3, s3, s39"); e("s_lshl_b32 s3, s3, 20")
    e("s_lshl_b32 s45, s40, 18"); e("s_add_u32 s3, s3, s45")
    for r in (4,8):
        e("s_add_u32 s%d, s%d, s3"%(r,r)); e("s_addc_u32 s%d, s%d, 0"%(r+1,r+1))
        e("s_mov_b32 s%d, 262144"%(r+2)); e("s_mov_b32 s%d, 0x20000"%(r+3))
    e("s_lshl_b32 s3, s39, 8"); e("s_add_u32 s12, s12, s3"); e("s_addc_u32 s13, s13, 0")
    e("s_sub_u32 s14, %d, s3"%(640*8192)); e("s_mov_b32 s15, 0x20000")
    e("s_mul_i32 s3, s39, %d"%(128*1280)); e("s_add_u32 s16, s16, s3"); e("s_addc_u32 s17, s17, 0")
    e("s_mov_b32 s18, %d"%(128*1280)); e("s_mov_b32 s19, 0x20000")
    e("s_mov_b32 s22, 2211840"); e("s_mov_b32 s23, 0x20000")
    e("s_mov_b32 s26, 2211840"); e("s_mov_b32 s27, 0x20000")
    e("s_mov_b32 s30, 0x100000"); e("s_mov_b32 s31, 0x20000")
    e("s_mul_i32 s3, s38, 1280"); e("s_add_u32 s32, s32, s3"); e("s_addc_u32 s33, s33, 0")
def sel_oob(v,cond_vcc=True):
    e("v_mov_b32 v11, 0x80000000"); nop(0); e("v_cndmask_b32 v%d, v11, v%d, vcc"%(v,v))
def y_addr(d,t):
    e("v_lshrrev_b32 v%d, 2, v0"%d); e("s_mul_i32 s3, s38, 40"); e("v_add_u32 v%d, s3, v%d"%(d,d))
    e("v_lshlrev_b32 v%d, 13, v%d"%(d,d)); e("s_lshl_b32 s3, s42, 6"); e("v_add_u32 v%d, s3, v%d"%(d,d))
    e("v_and_b32 v%d, 3, v0"%t); e("v_lshlrev_b32 v%d, 4, v%d"%(t,t)); e("v_add_u32 v%d, v%d, v%d"%(d,d,t))
def zero_phase():
    for r in range(12,16): e("v_mov_b32 v%d, 0"%r)
    y_addr(9,10)
    e("v_cmp_gt_u32 vcc, 160, v0"); sel_oob(9)
    e("v_subrev_u32 v10, 160, v0"); e("v_lshlrev_b32 v16, 4, v10"); e("s_lshl_b32 s3, s2, 6"); e("s_add_u32 s3, s3, %d"%W_H)
    e("v_add_u32 v16, s3, v16"); e("s_cmp_lt_u32 s2, 80"); e("s_cselect_b32 s45, 4, 0")
    e("v_cmp_gt_u32 vcc, s45, v10"); nop(1); e("v_cndmask_b32 v9, v9, v16, vcc")
    g.vmem("buffer_store_dwordx4 v[12:15], v9, s[28:31], 0 offen sc1","z")
    e("s_sub_u32 s45, s2, 80"); e("v_lshrrev_b32 v9, 3, v0"); e("v_mul_u32_u24 v9, 54, v9"); e("v_add_u32 v9, s45, v9")
    e("v_lshlrev_b32 v9, 7, v9"); e("v_and_b32 v10, 7, v0"); e("v_lshlrev_b32 v10, 4, v10"); e("v_add_u32 v9, v9, v10")
    e("v_add_u32 v9, %d, v9"%W_Z); e("s_cmp_lt_u32 s45, 54"); e("s_cselect_b32 s45, 320, 0")
    e("v_cmp_gt_u32 vcc, s45, v0"); sel_oob(9)
    g.vmem("buffer_store_dwordx4 v[12:15], v9, s[28:31], 0 offen sc1","z")
    e("s_lshl_b32 s3, s38, 7"); e("s_add_u32 s3, s3, s42"); e("s_lshl_b32 s3, s3, 3"); e("s_add_u32 s47, s3, %d"%W_ML)
    e("v_mov_b32 v9, s47"); e("v_cmp_eq_u32 vcc, 0, v0"); sel_oob(9)
    g.vmem("buffer_store_dwordx2 v[12:13], v9, s[28:31], 0 offen sc1","z")
def wq_issue(i,area):
    e("s_add_u32 s3, s41, %d"%(8*i)); e("s_lshl_b32 s45, s3, 18")
    e("s_cmp_lt_u32 s3, 20"); e("s_cselect_b32 s45, s45, 0x80000000")
    e("v_lshlrev_b32 v9, 16, v3"); e("v_lshl_add_u32 v9, v4, 4, v9"); e("v_or_b32 v9, s45, v9")
    w_loads(area,9,12,70,"wq%d"%i)
def wo_issue(i,area):
    e("s_and_b32 s3, s41, 3"); e("s_mul_i32 s45, s3, %d"%(32*1280)); e("s_lshr_b32 s3, s41, 2"); e("s_mul_i32 s3, s3, 3")
    e("s_add_u32 s3, s3, %d"%i); e("s_lshl_b32 s46, s3, 8"); e("s_add_u32 s45, s45, s46")
    e("s_cmp_lt_u32 s3, 5"); e("s_cselect_b32 s45, s45, 0x80000000")
    e("v_mul_u32_u24 v9, %d, v3"%(8*1280)); e("v_lshl_add_u32 v9, v4, 4, v9"); e("v_add_u32 v9, s45, v9")
    w_loads(area,9,16,78,"wo%d"%i)
def ffn_issue(which,area):
    e("s_sub_u32 s48, s2, 80"); e("s_cmp_lt_u32 s48, 54"); e("s_cselect_b32 s46, 5, 0"); e("s_cmp_lt_u32 s41, s46")
    e("s_cselect_b32 s46, 0, 0x80000000")
    if which==1:
        e("v_lshrrev_b32 v9, 2, v4"); e("v_lshlrev_b32 v9, 2, v9"); e("v_add_u32 v9, v9, v3"); e("v_mul_u32_u24 v9, %d, v9"%(8*3456))
        e("v_and_b32 v10, 3, v4"); e("v_lshl_add_u32 v9, v10, 4, v9")
        e("s_mul_i32 s45, s41, %d"%(128*3456)); e("s_lshl_b32 s3, s48, 6"); e("s_add_u32 s45, s45, s3")
    else:
        e("v_mul_u32_u24 v9, %d, v3"%(8*1280)); e("v_lshl_add_u32 v9, v4, 4, v9")
        e("s_mul_i32 s45, s48, %d"%(32*1280)); e("s_lshl_b32 s3, s41, 8"); e("s_add_u32 s45, s45, s3")
    e("s_cmp_eq_u32 s46, 0"); e("s_cselect_b32 s45, s45, s46")
    e("v_add_u32 v9, s45, v9")
    w_loads(area,9,20 if which==1 else 24,86 if which==1 else 78,"w%d"%which)
def qk(area,dst):
    d=12
    for q in range(4):
        for i in range(8):
            c="0" if q==0 else "v%d"%(d+i)
            e("v_dot2_f32_bf16 v%d, v%d, v%d, %s"%(d+i,area+4*i+q,28+q,c))
    nop(3)
    for i in range(4):
        e("v_add_f32_dpp v%d, v%d, v%d row_ror:8 row_mask:0xf bank_mask:0x3"%(d+i,d+i,d+i))
        e("v_add_f32_dpp v%d, v%d, v%d row_ror:8 row_mask:0xf bank_mask:0xc"%(d+i,d+i+4,d+i+4))
    nop(1)
    for i in range(2):
        e("v_add_f32_dpp v%d, v%d, v%d row_shl:4 row_mask:0xf bank_mask:0x5"%(d+i,d+i,d+i))
        e("v_add_f32_dpp v%d, v%d, v%d row_shr:4 row_mask:0xf bank_mask:0xa"%(d+i,d+i+2,d+i+2))
    nop(1)
    for i in range(2):
        e("v_add_f32_dpp v%d, v%d, v%d quad_perm:[2,3,0,1] row_mask:0xf bank_mask:0xf"%(d+4+i,d+i,d+i))
    nop(0)
    e("v_cndmask_b32 v%d, v%d, v%d, s[54:55]"%(d,d+4,d+5)); nop(1)
    e("v_add_f32_dpp v%d, v%d, v%d quad_perm:[1,0,3,2] row_mask:0xf bank_mask:0xf"%(d,d,d))
    bf16r(d,d); e("v_mul_f32 v%d, 0x3db504f3, v%d"%(d,d)); bf16r(d,d)
    e("v_mul_f32 v%d, 0x3fb8aa3b, v%d"%(dst,d))
```

```python
from g1 import *
import g1
def main():
    prologue(); stamp(0)
    for k in range(1,7):
        if DBG: e("s_mov_b32 s%d, s96"%SREG[k])
    zero_phase()
    e("v_lshlrev_b32 v9, 2, v1")
    for i in range(5): g.vmem("global_load_dword v%d, v9, s[32:33] offset:%d"%(24+i,256*i),"x")
    wq_issue(0,B0); wq_issue(1,B1); wq_issue(2,B2)
    kv_loads(A0,4,0,"K0"); kv_loads(A1,4,1,"K1"); kv_loads(A2,4,2,"K2")
    g.wait("x")
    vals=list(range(DD,DD+10))
    for i in range(5):
        e("v_lshlrev_b32 v%d, 16, v%d"%(DD+2*i,24+i)); e("v_and_b32 v%d, 0xffff0000, v%d"%(DD+2*i+1,24+i))
    layernorm(vals,False,12)
    e("v_lshlrev_b32 v9, 2, v1")
    for i in range(5):
        e("v_cvt_pk_bf16_f32 v%d, v%d, v%d"%(24+i,DD+2*i,DD+2*i+1))
        e("ds_write_b32 v9, v%d offset:%d"%(24+i,L_LN+256*i))
    e("s_waitcnt lgkmcnt(0)")
    for i,ar in enumerate((B0,B1,B2)):
        e("s_add_u32 s3, s41, %d"%(8*i)); e("s_cmp_lt_u32 s3, 20"); e("s_cselect_b32 s3, s3, 0"); e("s_lshl_b32 s3, s3, 6")
        e("v_lshlrev_b32 v9, 4, v3"); e("v_add_u32 v9, s3, v9"); e("ds_read_b128 v[24:27], v9 offset:%d"%L_LN)
        g.wait("wq%d"%i); e("s_waitcnt lgkmcnt(0)")
        tile_mfma(ar,24,DD,i==0)
    e("s_lshl_b32 s3, s41, 9"); e("v_lshlrev_b32 v10, 5, v4"); e("v_add_u32 v10, s3, v10"); e("v_add_u32 v10, %d, v10"%L_QP)
    d_write(DD,10)
    e("s_waitcnt lgkmcnt(0)")
    kv_loads(DD,4,3,"K3"); kv_loads(B0,8,0,"V0"); kv_loads(B1,8,1,"V1"); kv_loads(B2,8,2,"V2")
    e("s_barrier")
    e("s_cmp_lg_u32 s41, 0"); e("s_cbranch_scc1 L_nocnt")
    e("v_mov_b32 v9, 0"); e("v_mov_b32 v10, 1"); e("s_mov_b64 exec, 1")
    e("global_atomic_add v9, v10, s[36:37] sc1"); e("s_mov_b64 exec, -1")
    g.lbl("L_nocnt")
    e("s_cmp_ge_u32 s41, 2"); e("s_cbranch_scc1 L_noq")
    e("v_lshlrev_b32 v9, 2, v0")
    for i in range(8): e("ds_read_b32 v%d, v9 offset:%d"%(12+i,L_QP+512*i))
    e("s_waitcnt lgkmcnt(0)")
    for i in range(1,8): e("v_add_f32 v12, v12, v%d"%(12+i))
    e("v_cvt_pk_bf16_f32 v12, v12, v12"); e("v_lshlrev_b32 v9, 1, v0"); e("ds_write_b16 v9, v12 offset:%d"%L_Q)
    e("s_waitcnt lgkmcnt(0)")
    g.lbl("L_noq")
    e("s_barrier")
    e("v_lshlrev_b32 v9, 4, v4"); e("ds_read_b128 v[28:31], v9 offset:%d"%L_Q); e("s_waitcnt lgkmcnt(0)")
    stamp(1)
    g.wait("K0"); qk(A0,5); kv_loads(A0,8,3,"V3")
    g.wait("K1"); qk(A1,6); wo_issue(0,A1)
    g.wait("K2"); qk(A2,7); wo_issue(1,A2)
    g.wait("K3"); qk(DD,8)
    stamp(2)
    e("v_max_f32 v9, v5, v6"); e("v_max3_f32 v9, v9, v7, v8")
    wavered("v_max_f32",9); e("v_readlane_b32 s50, v9, 63"); nop(1)
    for i in range(4): e("v_subrev_f32 v%d, s50, v%d"%(5+i,5+i))
    for i in range(4): e("v_exp_f32 v%d, v%d"%(5+i,5+i))
    nop(0)
    e("v_add_f32 v9, v5, v6"); e("v_add_f32 v10, v7, v8"); e("v_add_f32 v9, v9, v10")
    e("v_lshrrev_b32 v10, 1, v4"); e("v_lshlrev_b32 v10, 1, v10"); e("v_lshl_add_u32 v10, v3, 4, v10")
    e("s_lshl_b32 s3, s41, 8"); e("v_add_u32 v10, s3, v10")
    for i in range(4):
        e("v_cvt_pk_bf16_f32 v%d, v%d, v%d"%(5+i,5+i,5+i)); e("ds_write_b16 v10, v%d offset:%d"%(5+i,L_P+64*i))
    wavered("v_add_f32",9); e("v_readlane_b32 s51, v9, 63"); nop(1)
    e("v_mov_b32 v12, s50"); e("v_mov_b32 v13, s51"); e("v_mul_f32 v13, 0.5, v13")
    e("s_lshl_b32 s3, s41, 3"); e("v_mov_b32 v9, s3"); e("s_mov_b64 exec, 1")
    e("ds_write_b64 v9, v[12:13] offset:%d"%L_ML); e("s_mov_b64 exec, -1")
    e("v_lshlrev_b32 v31, 4, v3"); e("s_lshl_b32 s3, s41, 8"); e("v_add_u32 v31, s3, v31")
    e("s_waitcnt lgkmcnt(0)")
    def pv(i,ar,tag):
        e("ds_read_b128 v[24:27], v31 offset:%d"%(L_P+64*i)); g.wait(tag); e("s_waitcnt lgkmcnt(0)")
        tile_mfma(ar,24,DD,i==0)
    pv(0,B0,"V0"); wo_issue(2,B0)
    pv(1,B1,"V1"); ffn_issue(1,B1)
    e("v_mov_b32 v9, 0"); g.vmem("global_load_dword v30, v9, s[36:37] sc1","cnt")
    pv(2,B2,"V2"); ffn_issue(2,B2)
    pv(3,A0,"V3")
    stamp(3)
    e("s_lshl_b32 s3, s41, 9"); e("v_lshlrev_b32 v10, 5, v4"); e("v_add_u32 v10, s3, v10"); e("v_add_u32 v10, %d, v10"%L_QP)
    d_write(DD,10)
    e("s_waitcnt lgkmcnt(0)"); e("s_barrier")
    e("s_cmp_ge_u32 s41, 2"); e("s_cbranch_scc1 L_noo")
    e("v_mov_b32 v9, 0")
    for i in range(4): e("ds_read_b128 %s, v9 offset:%d"%(rng(DD+4*i,4),L_ML+16*i))
    e("v_lshlrev_b32 v9, 2, v0")
    for i in range(8): e("ds_read_b32 v%d, v9 offset:%d"%(12+i,L_QP+512*i))
    e("s_waitcnt lgkmcnt(8)")
    e("v_max3_f32 v10, v%d, v%d, v%d"%(DD,DD+2,DD+4)); e("v_max3_f32 v10, v10, v%d, v%d"%(DD+6,DD+8))
    e("v_max3_f32 v10, v10, v%d, v%d"%(DD+10,DD+12)); e("v_max_f32 v10, v10, v%d"%(DD+14))
    for i in range(8): e("v_sub_f32 v%d, v%d, v10"%(DD+2*i,DD+2*i))
    for i in range(8): e("v_exp_f32 v%d, v%d"%(DD+2*i,DD+2*i))
    nop(0)
    e("v_mul_f32 v11, v%d, v%d"%(DD,DD+1))
    for i in range(1,8): e("v_fmac_f32 v11, v%d, v%d"%(DD+2*i,DD+2*i+1))
    e("s_waitcnt lgkmcnt(0)")
    e("v_mul_f32 v12, v12, v%d"%DD)
    for i in range(1,8): e("v_fmac_f32 v12, v%d, v%d"%(12+i,DD+2*i))
    e("v_rcp_f32 v13, v11"); nop(0); e("v_mul_f32 v12, v12, v13")
    e("v_cvt_pk_bf16_f32 v12, v12, v12"); e("v_lshlrev_b32 v9, 1, v0"); e("ds_write_b16 v9, v12 offset:%d"%L_Q)
    e("v_or_b32 v14, 1, v10"); e("v_or_b32 v15, 1, v11"); e("v_mov_b32 v9, s47"); e("v_cmp_eq_u32 vcc, 0, v0"); sel_oob(9)
    e("buffer_store_dwordx2 v[14:15], v9, s[28:31], 0 offen sc1")
    e("s_waitcnt lgkmcnt(0)")
    g.lbl("L_noo")
    e("s_barrier")
    e("s_and_b32 s3, s41, 3"); e("s_lshl_b32 s3, s3, 6"); e("v_lshlrev_b32 v9, 4, v3"); e("v_add_u32 v9, s3, v9")
    e("ds_read_b128 v[24:27], v9 offset:%d"%L_Q)
    e("s_and_b32 s3, s41, 3"); e("s_mul_i32 s3, s3, 3072"); e("s_lshr_b32 s45, s41, 2"); e("s_mul_i32 s45, s45, 1536")
    e("s_add_u32 s3, s3, s45"); e("s_add_u32 s3, s3, %d"%L_YP); e("v_lshlrev_b32 v10, 5, v4"); e("v_add_u32 v10, s3, v10")
    e("s_waitcnt lgkmcnt(0)")
    for i,(ar,D) in enumerate(((A1,DD),(A2,A0),(B0,DD))):
        g.wait("wo%d"%i); tile_mfma(ar,24,D,True); d_write(D,10)
        if i<2: e("v_add_u32 v10, 512, v10")
    e("s_waitcnt lgkmcnt(0)"); e("s_barrier")
    y_addr(9,10); e("v_cmp_gt_u32 vcc, 160, v0"); sel_oob(9)
    e("s_cmp_ge_u32 s41, 3"); e("s_cbranch_scc1 L_noy")
    e("v_lshlrev_b32 v10, 4, v0")
    for i in range(4): e("ds_read_b128 %s, v10 offset:%d"%(rng(DD+4*i,4),L_YP+3072*i))
    e("s_waitcnt lgkmcnt(0)")
    for x in range(4):
        e("v_add_f32 v%d, v%d, v%d"%(DD+x,DD+x,DD+4+x)); e("v_add_f32 v%d, v%d, v%d"%(DD+8+x,DD+8+x,DD+12+x))
        e("v_add_f32 v%d, v%d, v%d"%(DD+x,DD+x,DD+8+x)); e("v_or_b32 v%d, 1, v%d"%(DD+x,DD+x))
    e("buffer_store_dwordx4 %s, v9, s[28:31], 0 offen sc1"%rng(DD,4))
    g.lbl("L_noy")
    stamp(4)
    e("s_cmp_ge_u32 s2, 174"); e("s_cbranch_scc1 L_end")
    g.wait("cnt"); e("s_mov_b32 s52, 0")
    g.lbl("L_cchk")
    e("v_readfirstlane_b32 s3, v30"); e("s_cmp_eq_u32 s3, 256"); e("s_cbranch_scc1 L_cok")
    e("s_add_u32 s52, s52, 1"); e("s_cmp_gt_u32 s52, %d"%POLLMAX); e("s_cbranch_scc1 L_cok")
    e("v_mov_b32 v9, 0"); e("global_load_dword v30, v9, s[36:37] sc1"); e("s_waitcnt vmcnt(0)"); e("s_branch L_cchk")
    g.lbl("L_cok")
    e("s_cmp_ge_u32 s2, 134"); e("s_cbranch_scc1 L_hopC")
    e("s_cmp_ge_u32 s2, 80"); e("s_cbranch_scc1 L_ffn")
    hopA(); ffn(); hopC()
    g.lbl("L_end"); stamp_out(); g.lbl("L_end2"); e("s_endpgm")
POLLMAX=20000
def poll(loads,words,extra=None):
    lp=g.newlbl("poll"); dn=g.newlbl("done")
    e("s_mov_b32 s52, 0"); g.lbl(lp)
    for l in loads: e(l)
    e("s_waitcnt vmcnt(0)")
    e("v_and_b32 v11, v%d, v%d"%(words[0],words[1]))
    for w in words[2:]: e("v_and_b32 v11, v11, v%d"%w)
    if extra is not None: e("v_or_b32 v11, v11, v%d"%extra)
    e("v_and_b32 v11, 1, v11"); e("v_cmp_ne_u32 vcc, 1, v11"); e("s_add_u32 s52, s52, 1")
    e("s_cmp_gt_u32 s52, %d"%POLLMAX); e("s_cbranch_scc1 %s"%dn)
    nop(1); e("s_cmp_eq_u64 vcc, 0"); e("s_cbranch_scc0 %s"%lp)
    g.lbl(dn)
    stamp(5)
def hopA():
    e("s_cmp_ge_u32 s2, 40"); e("s_cselect_b32 s48, 1, 0")
    e("s_lshl_b32 s3, s2, 13"); e("v_lshlrev_b32 v9, 4, v0"); e("v_add_u32 v9, s3, v9")
    e("s_lshl_b32 s3, s48, 10"); e("s_add_u32 s3, s3, %d"%W_ML)
    e("v_lshrrev_b32 v10, 4, v0"); e("v_lshlrev_b32 v10, 5, v10"); e("v_add_u32 v10, s3, v10")
    e("v_lshrrev_b32 v28, 2, v0"); e("v_lshlrev_b32 v28, 3, v28"); e("v_add_u32 v28, s3, v28")
    e("s_lshl_b32 s3, s48, 0"); e("s_sub_u32 s3, s3, s38"); e("s_mul_i32 s3, s3, 1280")
    e("s_mul_i32 s45, s48, 40"); e("s_sub_u32 s45, s2, s45"); e("s_lshl_b32 s45, s45, 5"); e("s_add_u32 s3, s3, s45")
    e("s_ashr_i32 s45, s3, 31"); e("s_add_u32 s58, s32, s3"); e("s_addc_u32 s59, s33, s45")
    e("v_lshlrev_b32 v29, 1, v4"); e("global_load_ushort v27, v29, s[58:59]")
    poll(["buffer_load_dwordx4 v[12:15], v9, s[28:31], 0 offen sc1","buffer_load_dwordx4 v[16:19], v10, s[28:31], 0 offen sc1",
          "buffer_load_dwordx4 v[20:23], v10, s[28:31], 0 offen offset:16 sc1","buffer_load_dwordx2 v[24:25], v28, s[28:31], 0 offen sc1"],
         list(range(12,26)))
    e("v_max3_f32 v10, v16, v18, v20"); e("v_max_f32 v10, v10, v22")
    for r in (16,18,20,22,24): e("v_sub_f32 v%d, v%d, v10"%(r,r))
    for r in (16,18,20,22,24): e("v_exp_f32 v%d, v%d"%(r,r))
    nop(0)
    e("v_mul_f32 v11, v16, v17"); e("v_fmac_f32 v11, v18, v19"); e("v_fmac_f32 v11, v20, v21"); e("v_fmac_f32 v11, v22, v23")
    e("v_rcp_f32 v11, v11"); e("v_mul_f32 v24, v24, v25"); nop(0); e("v_mul_f32 v24, v24, v11")
    for x in range(4): e("v_mul_f32 v%d, v%d, v24"%(12+x,12+x))
    for r in (4,8):
        nop(1)
        for x in range(4): e("v_add_f32_dpp v%d, v%d, v%d row_ror:%d row_mask:0xf bank_mask:0xf"%(12+x,12+x,12+x,r))
    e("v_lshrrev_b32 v9, 4, v0"); e("v_lshlrev_b32 v9, 6, v9"); e("v_lshl_add_u32 v9, v4, 4, v9")
    e("v_cmp_gt_u32 vcc, 4, v4"); e("s_and_saveexec_b64 s[94:95], vcc")
    e("ds_write_b128 v9, v[12:15] offset:%d"%L_T); e("s_mov_b64 exec, -1")
    e("s_waitcnt lgkmcnt(0)"); e("s_barrier")
    e("s_cmp_lg_u32 s41, 0"); e("s_cbranch_scc1 L_end")
    e("v_lshlrev_b32 v9, 9, v3"); e("v_lshl_add_u32 v9, v4, 2, v9")
    for i in range(8): e("ds_read_b32 v%d, v9 offset:%d"%(12+i,L_T+64*i))
    e("s_waitcnt lgkmcnt(0)")
    for i in range(1,8): e("v_add_f32 v12, v12, v%d"%(12+i))
    xrow(12,13)
    bf16r(12,12); e("v_lshlrev_b32 v27, 16, v27"); e("v_add_f32 v12, v12, v27"); bf16r(12,12); e("v_or_b32 v12, 1, v12")
    e("s_lshl_b32 s3, s2, 6"); e("s_add_u32 s3, s3, %d"%W_H); e("v_lshlrev_b32 v9, 2, v4"); e("v_add_u32 v9, s3, v9")
    e("v_cmp_gt_u32 vcc, 16, v1"); sel_oob(9)
    e("buffer_store_dword v12, v9, s[28:31], 0 offen sc1")
    e("s_branch L_end")
def xrow(v,t,only32=False):
    if not only32:
        e("v_mov_b32 v%d, v%d"%(t,v)); nop(1); e("v_permlane16_swap_b32 v%d, v%d"%(v,t)); nop(1); e("v_add_f32 v%d, v%d, v%d"%(v,v,t))
    e("v_mov_b32 v%d, v%d"%(t,v)); nop(1); e("v_permlane32_swap_b32 v%d, v%d"%(v,t)); nop(1); e("v_add_f32 v%d, v%d, v%d"%(v,v,t))
def ffn():
    g.lbl("L_ffn")
    e("s_cmp_ge_u32 s41, 5"); e("s_cbranch_scc1 L_ffn_idle")
    e("s_sub_u32 s48, s2, 80")
    e("v_lshrrev_b32 v9, 5, v1"); e("v_mul_u32_u24 v9, 2560, v9"); e("v_and_b32 v10, 31, v1"); e("v_lshl_add_u32 v9, v10, 4, v9")
    e("v_add_u32 v9, %d, v9"%W_H)
    vals=list(range(DD,DD+20))
    poll(["buffer_load_dwordx4 %s, v9, s[28:31], 0 offen offset:%d sc1"%(rng(DD+4*i,4),512*i) for i in range(5)],vals)
    for v in vals: e("v_and_b32 v%d, 0xffff0000, v%d"%(v,v))
    layernorm(vals,True,12)
    e("v_lshrrev_b32 v9, 5, v1"); e("v_mul_u32_u24 v9, 1280, v9"); e("v_and_b32 v10, 31, v1"); e("v_lshl_add_u32 v9, v10, 3, v9")
    for i in range(5):
        e("v_cvt_pk_bf16_f32 v12, v%d, v%d"%(DD+4*i,DD+4*i+1)); e("v_cvt_pk_bf16_f32 v13, v%d, v%d"%(DD+4*i+2,DD+4*i+3))
        e("ds_write_b64 v9, v[12:13] offset:%d"%(L_LN+256*i)); nop(0)
    e("s_waitcnt lgkmcnt(0)")
    e("v_and_b32 v9, 1, v4"); e("v_mul_u32_u24 v9, 1280, v9"); e("v_lshrrev_b32 v10, 2, v4"); e("v_lshl_add_u32 v9, v10, 6, v9")
    e("v_lshl_add_u32 v9, v3, 4, v9"); e("s_lshl_b32 s3, s41, 8"); e("v_add_u32 v9, s3, v9")
    e("ds_read_b128 v[24:27], v9 offset:%d"%L_LN); e("s_waitcnt lgkmcnt(0)")
    tile_mfma(B1,24,DD,True)
    e("v_lshrrev_b32 v10, 2, v4"); e("v_cmp_eq_u32 vcc, v10, v3")
    e("v_lshlrev_b32 v9, 8, v10"); e("v_and_b32 v10, 3, v4"); e("v_lshl_add_u32 v9, v10, 5, v9")
    e("s_lshl_b32 s3, s41, 10"); e("v_add_u32 v9, s3, v9"); e("v_add_u32 v9, %d, v9"%L_T)
    nop(7); e("s_and_saveexec_b64 s[94:95], vcc")
    for b in range(2):
        for c in range(0,8,2):
            e("ds_write2_b32 v9, v%d, v%d offset0:%d offset1:%d"%(DD+4*c+b,DD+4*(c+1)+b,32*b+c,32*b+c+1))
    e("s_mov_b64 exec, -1"); e("s_waitcnt lgkmcnt(0)")
    g.lbl("L_ffn_idle")
    e("s_barrier")
    e("s_cmp_ge_u32 s41, 5"); e("s_cbranch_scc1 L_end")
    e("v_lshlrev_b32 v9, 2, v1")
    for i in range(20): e("ds_read_b32 v%d, v9 offset:%d"%(DD+i,L_T+256*i))
    e("s_waitcnt lgkmcnt(0)")
    for i in range(10): e("v_add_f32 v%d, v%d, v%d"%(DD+i,DD+i,DD+10+i))
    for i in range(5): e("v_add_f32 v%d, v%d, v%d"%(DD+i,DD+i,DD+5+i))
    for i in range(1,5): e("v_add_f32 v%d, v%d, v%d"%(DD,DD,DD+i))
    e("v_max_f32 v%d, 0, v%d"%(DD,DD)); e("v_cvt_pk_bf16_f32 v12, v%d, v%d"%(DD,DD))
    e("v_lshlrev_b32 v9, 1, v1"); e("ds_write_b16 v9, v12 offset:%d"%L_Q); e("s_waitcnt lgkmcnt(0)")
    e("v_and_b32 v9, 1, v4"); e("v_lshlrev_b32 v9, 6, v9"); e("v_lshl_add_u32 v9, v3, 4, v9")
    e("ds_read_b128 v[24:27], v9 offset:%d"%L_Q); e("s_waitcnt lgkmcnt(0)")
    tile_mfma(B2,24,DD,True)
    e("v_mul_u32_u24 v9, 20, v3"); e("v_lshrrev_b32 v10, 2, v4"); e("v_add_u32 v9, v9, v10"); e("s_lshl_b32 s3, s41, 2")
    e("v_add_u32 v9, s3, v9"); e("v_mul_u32_u24 v9, 54, v9"); e("v_add_u32 v9, s48, v9"); e("v_lshlrev_b32 v9, 7, v9")
    e("v_and_b32 v10, 3, v4"); e("v_lshl_add_u32 v9, v10, 5, v9"); e("v_add_u32 v9, %d, v9"%W_Z)
    e("v_cmp_gt_u32 vcc, 32, v1"); sel_oob(9)
    e("v_cmp_eq_u32 vcc, 1, v3"); nop(7)
    for c in range(8):
        e("v_cndmask_b32 v%d, v%d, v%d, vcc"%(12+c,DD+4*c,DD+4*c+1));
    for c in range(8): e("v_or_b32 v%d, 1, v%d"%(12+c,12+c))
    e("buffer_store_dwordx4 v[12:15], v9, s[28:31], 0 offen sc1")
    e("buffer_store_dwordx4 v[16:19], v9, s[28:31], 0 offen offset:16 sc1")
    e("s_branch L_end")
def hopC():
    g.lbl("L_hopC")
    e("s_sub_u32 s48, s2, 134")
    e("s_mul_i32 s3, s48, 6912"); e("s_add_u32 s3, s3, %d"%W_Z); e("v_lshlrev_b32 v9, 4, v0"); e("v_add_u32 v9, s3, v9")
    e("v_cmp_gt_u32 vcc, 432, v0"); sel_oob(9)
    e("v_cmp_le_u32 vcc, 432, v0"); nop(1); e("v_cndmask_b32 v28, 0, 1, vcc")
    e("s_lshl_b32 s3, s48, 7"); e("s_add_u32 s3, s3, %d"%W_H); e("v_and_b32 v10, 31, v1"); e("v_lshl_add_u32 v10, v10, 2, s3")
    e("v_mov_b32 v17, -1");
    poll(["buffer_load_dwordx4 v[12:15], v9, s[28:31], 0 offen sc1"],[12,13,14,15],28)
    e("buffer_load_dword v27, v10, s[28:31], 0 offen sc1")
    nop(1)
    for x in range(4): e("v_add_f32_dpp v%d, v%d, v%d row_ror:8 row_mask:0xf bank_mask:0xf"%(12+x,12+x,12+x))
    e("v_lshrrev_b32 v9, 4, v0"); e("v_lshlrev_b32 v9, 7, v9"); e("v_lshl_add_u32 v9, v4, 4, v9")
    e("v_cmp_gt_u32 vcc, 8, v4"); e("s_and_saveexec_b64 s[94:95], vcc")
    e("ds_write_b128 v9, v[12:15] offset:%d"%L_T); e("s_mov_b64 exec, -1")
    e("s_waitcnt lgkmcnt(0)"); e("s_barrier")
    e("s_cmp_lg_u32 s41, 0"); e("s_cbranch_scc1 L_end")
    e("v_lshrrev_b32 v9, 5, v1"); e("v_lshlrev_b32 v9, 11, v9"); e("v_and_b32 v11, 31, v1"); e("v_lshl_add_u32 v9, v11, 2, v9")
    for i in range(16): e("ds_read_b32 v%d, v9 offset:%d"%(DD+i,L_T+128*i))
    e("s_waitcnt lgkmcnt(0)")
    for i in range(8): e("v_add_f32 v%d, v%d, v%d"%(DD+i,DD+i,DD+8+i))
    for i in range(4): e("v_add_f32 v%d, v%d, v%d"%(DD+i,DD+i,DD+4+i))
    for i in range(1,4): e("v_add_f32 v%d, v%d, v%d"%(DD,DD,DD+i))
    xrow(DD,DD+1,True)
    e("s_waitcnt vmcnt(0)")
    bf16r(DD,DD); e("v_and_b32 v27, 0xffff0000, v27"); e("v_add_f32 v%d, v%d, v27"%(DD,DD))
    e("v_cvt_pk_bf16_f32 v12, v%d, v%d"%(DD,DD))
    e("s_lshl_b32 s3, s48, 6"); e("v_lshlrev_b32 v9, 1, v11"); e("v_add_u32 v9, s3, v9")
    e("s_mov_b64 exec, 0xffffffff"); e("global_store_short v9, v12, s[34:35]"); e("s_mov_b64 exec, -1")
HDR=open('cdna_kernels/%s.s.ref'%NAME).read().split("; @launch")[0]
def build(path):
    main()
    out=HDR+"; @launch grid=(256,1,1) block=(512,1,1) lds=%d\n"%L_SIZE
    out+='.amdgcn_target "amdgcn-amd-amdhsa--gfx950"\n.text\n.globl %s_kernel\n.p2align 8\n.type %s_kernel,@function\n%s_kernel:\n'%(NAME,NAME,NAME)
    out+="\n".join(g.L)+"\n"
    out+='.section .rodata,"a"\n.p2align 6\n.amdhsa_kernel %s_kernel\n  .amdhsa_next_free_vgpr 256\n  .amdhsa_next_free_sgpr 102\n  .amdhsa_accum_offset 256\n  .amdhsa_group_segment_fixed_size 0\n  .amdhsa_kernarg_size 88\n  .amdhsa_user_sgpr_count 2\n  .amdhsa_user_sgpr_kernarg_segment_ptr 1\n  .amdhsa_system_sgpr_workgroup_id_x 1\n.end_amdhsa_kernel\n'%NAME
    open(path,'w').write(out)
if __name__=="__main__":
    import sys
    build(sys.argv[1] if len(sys.argv)>1 else 'cdna_kernels/%s.s'%NAME)
```

```python
import os
NAME="sequential_preLN__gqa_block_cached__dense_activation_relu__decode"
class G:
    def __init__(s):
        s.L=[]; s.vm=[]; s.lab=0
    def e(s,t): s.L.append("    "+t)
    def lbl(s,t): s.L.append(t+":")
    def newlbl(s,p):
        s.lab+=1; return "L_%s_%d"%(p,s.lab)
    def vmem(s,t,tag=None):
        s.e(t); s.vm.append(tag)
    def wait(s,tag):
        idx=max(i for i,t in enumerate(s.vm) if t==tag)
        n=len(s.vm)-1-idx
        assert n<=63,(tag,n)
        s.e("s_waitcnt vmcnt(%d)"%n)
    def waitall(s):
        s.e("s_waitcnt vmcnt(0)")
import os
g=G(); e=g.e
DBG=os.environ.get("DBG")
SREG=[96,97,100,101,68,69,49,53]
def stamp(k):
    if not DBG: return
    e("s_memrealtime s[98:99]"); e("s_waitcnt lgkmcnt(0)"); e("s_mov_b32 s%d, s98"%SREG[k])
def stamp_out():
    if not DBG: return
    stamp(7)
    e("s_cmp_lg_u32 s41, 0"); e("s_cbranch_scc1 L_end2")
    e("s_lshl_b32 s3, s2, 5"); e("s_add_u32 s3, s3, 0xF0000")
    e("v_mov_b32 v9, s3"); e("s_mov_b64 exec, 1")
    for k in range(8):
        e("v_mov_b32 v10, s%d"%SREG[k])
        e("buffer_store_dword v10, v9, s[28:31], 0 offen offset:%d"%(4*k))
        e("s_waitcnt vmcnt(0)")
A0,A1,A2,B0,B1,B2,DD=32,64,96,128,160,192,224
L_LN=0; L_QP=2560; L_Q=L_QP+4096; L_P=L_Q+256; L_ML=L_P+2048; L_YP=L_ML+128; L_T=L_YP+4*768*4
L_SIZE=L_T+8192
W_Y=0; W_ML=0xA0000; W_H=0xA1000; W_Z=0xA4000
OOB=0x80000000
KVFLAG=os.environ.get("KVFLAG"," nt")
def rng(a,n): return "v[%d:%d]"%(a,a+n-1)
def nop(n): e("s_nop %d"%n)
def bf16r(d,a):
    e("v_cvt_pk_bf16_f32 v%d, v%d, v%d"%(d,a,a)); e("v_and_b32 v%d, 0xffff0000, v%d"%(d,d))
def rowred(op,v):
    for r in (8,4,2,1):
        nop(1); e("%s_dpp v%d, v%d, v%d row_ror:%d row_mask:0xf bank_mask:0xf"%(op,v,v,v,r))
def wavered(op,v,half=False):
    rowred(op,v)
    nop(1); e("%s_dpp v%d, v%d, v%d row_bcast:15 row_mask:0xa bank_mask:0xf"%(op,v,v,v))
    if not half:
        nop(1); e("%s_dpp v%d, v%d, v%d row_bcast:31 row_mask:0xc bank_mask:0xf"%(op,v,v,v))
    nop(1)
def tile_loads(area,voff,srd,soffs,tag,flag=""):
    for i in range(8):
        so,io=soffs[i]
        g.vmem("buffer_load_dwordx4 %s, v%d, s[%d:%d], %s offen offset:%d%s"%(rng(area+4*i,4),voff,srd,srd+3,so,io,flag),tag)
def kv_loads(area,srd,quarter,tag):
    tile_loads(area,2,srd,[("s%d"%(60+(quarter*8+i)//4),((quarter*8+i)%4)*1024) for i in range(8)],tag,KVFLAG)
def w_loads(area,voff,srd,sbase,tag):
    tile_loads(area,voff,srd,[("s%d"%(sbase+i),0) for i in range(8)],tag)
PT=[12,16,20]
def tile_mfma(area,aop,D,first):
    def perms(c,t):
        q=c>>1; sel="s44" if c&1 else "s43"
        for r in range(4):
            e("v_perm_b32 v%d, v%d, v%d, %s"%(t+r,area+4*(2*r+1)+q,area+4*(2*r)+q,sel))
    perms(0,PT[0])
    for c in range(8):
        if c+1<8: perms(c+1,PT[(c+1)%3])
        else: nop(1)
        cc="0" if first else rng(D+4*c,4)
        e("v_mfma_f32_16x16x32_bf16 %s, %s, %s, %s"%(rng(D+4*c,4),rng(aop,4),rng(PT[c%3],4),cc))
def preperm(src,dst):
    for c in range(8):
        q=c>>1; sel="s44" if c&1 else "s43"
        for r in range(4):
            e("v_perm_b32 v%d, v%d, v%d, %s"%(dst+4*c+r,src+4*(2*r+1)+q,src+4*(2*r)+q,sel))
def mfma_only(B,aop,D):
    for c in range(8):
        e("v_mfma_f32_16x16x32_bf16 %s, %s, %s, 0"%(rng(D+4*c,4),rng(aop,4),rng(B+4*c,4)))
def d_write(D,vaddr,reg=0,short=False):
    if not short: nop(7); nop(1)
    e("s_mov_b64 exec, 0xffff")
    for c in range(0,8,2):
        e("ds_write2_b32 v%d, v%d, v%d offset0:%d offset1:%d"%(vaddr,D+4*c+reg,D+4*(c+1)+reg,c,c+1))
    e("s_mov_b64 exec, -1")
def layernorm(vals,half,t):
    n=len(vals); s=t;
    e("v_add_f32 v%d, v%d, v%d"%(s,vals[0],vals[1]))
    for v in vals[2:]: e("v_add_f32 v%d, v%d, v%d"%(s,s,v))
    wavered("v_add_f32",s,half)
    def bc(dst,src):
        if half:
            e("v_readlane_b32 s45, v%d, 31"%src); e("v_readlane_b32 s46, v%d, 63"%src); nop(1)
            e("v_mov_b32 v%d, s45"%dst); e("v_mov_b32 v%d, s46"%(dst+1)); nop(0)
            e("v_cndmask_b32 v%d, v%d, v%d, s[56:57]"%(dst,dst,dst+1))
        else:
            e("v_readlane_b32 s45, v%d, 63"%src); nop(1); e("v_mov_b32 v%d, s45"%dst)
    bc(t+1,s)
    e("v_mul_f32 v%d, 0x3acccccd, v%d"%(t+1,t+1))
    e("v_sub_f32 v%d, v%d, v%d"%(t+2,vals[0],t+1)); e("v_mul_f32 v%d, v%d, v%d"%(s,t+2,t+2))
    for v in vals[1:]:
        e("v_sub_f32 v%d, v%d, v%d"%(t+2,v,t+1)); e("v_fmac_f32 v%d, v%d, v%d"%(s,t+2,t+2))
    wavered("v_add_f32",s,half)
    bc(t+2,s)
    e("v_mul_f32 v%d, 0x3acccccd, v%d"%(t+2,t+2))
    bf16r(t+2,t+2); e("v_add_f32 v%d, 0x3727c5ac, v%d"%(t+2,t+2)); bf16r(t+2,t+2)
    e("v_sqrt_f32 v%d, v%d"%(t+2,t+2)); nop(0); bf16r(t+2,t+2)
    e("v_rcp_f32 v%d, v%d"%(t+3,t+2))
    bf16r(t+1,t+1)
    for v in vals:
        e("v_sub_f32 v%d, v%d, v%d"%(v,v,t+1)); bf16r(v,v)
        e("v_mul_f32 v%d, v%d, v%d"%(t+4,v,t+3))
        e("v_fma_f32 v%d, -v%d, v%d, v%d"%(t+5,t+4,t+2,v))
        e("v_fma_f32 v%d, v%d, v%d, v%d"%(v,t+5,t+3,t+4))
def prologue():
    e("s_cmp_ge_u32 s2, 256"); e("s_cbranch_scc1 L_end2")
    e("s_load_dwordx2 s[32:33], s[0:1], 0")
    e("s_load_dwordx2 s[4:5], s[0:1], 8"); e("s_load_dwordx2 s[8:9], s[0:1], 16")
    e("s_load_dwordx2 s[12:13], s[0:1], 24"); e("s_load_dwordx2 s[16:17], s[0:1], 32")
    e("s_load_dwordx2 s[20:21], s[0:1], 48"); e("s_load_dwordx2 s[24:25], s[0:1], 56")
    e("s_load_dwordx2 s[34:35], s[0:1], 64"); e("s_load_dwordx2 s[36:37], s[0:1], 72")
    e("s_load_dwordx2 s[28:29], s[0:1], 80")
    e("s_and_b32 s39, s2, 7"); e("s_lshl_b32 s39, s39, 2"); e("s_lshr_b32 s3, s2, 3"); e("s_and_b32 s3, s3, 3")
    e("s_or_b32 s39, s39, s3")
    e("s_lshr_b32 s3, s2, 5"); e("s_lshr_b32 s38, s3, 2"); e("s_and_b32 s40, s3, 3")
    e("s_lshl_b32 s42, s39, 2"); e("s_or_b32 s42, s42, s40")
    e("v_lshrrev_b32 v1, 6, v0"); nop(0); e("v_readfirstlane_b32 s41, v1")
    e("v_and_b32 v1, 63, v0"); e("v_lshrrev_b32 v3, 4, v1"); e("v_and_b32 v4, 15, v1")
    e("s_mov_b32 s43, 0x05040100"); e("s_mov_b32 s44, 0x07060302")
    for m in range(8):
        e("s_mov_b32 s%d, %d"%(60+m,4096*m)); e("s_mov_b32 s%d, %d"%(70+m,8192*m))
        e("s_mov_b32 s%d, %d"%(78+m,1280*m)); e("s_mov_b32 s%d, %d"%(86+m,3456*m))
    e("s_mov_b32 s54, 0xcccccccc"); e("s_mov_b32 s55, 0xcccccccc")
    e("s_mov_b32 s56, 0"); e("s_mov_b32 s57, -1")
    e("v_lshlrev_b32 v2, 4, v1"); e("s_lshl_b32 s3, s41, 15"); e("v_add_u32 v2, s3, v2")
    e("s_waitcnt lgkmcnt(0)")
    e("s_lshl_b32 s3, s38, 5"); e("s_add_u32 s3, s3, s39"); e("s_lshl_b32 s3, s3, 20")
    e("s_lshl_b32 s45, s40, 18"); e("s_add_u32 s3, s3, s45")
    for r in (4,8):
        e("s_add_u32 s%d, s%d, s3"%(r,r)); e("s_addc_u32 s%d, s%d, 0"%(r+1,r+1))
        e("s_mov_b32 s%d, 262144"%(r+2)); e("s_mov_b32 s%d, 0x20000"%(r+3))
    e("s_lshl_b32 s3, s39, 8"); e("s_add_u32 s12, s12, s3"); e("s_addc_u32 s13, s13, 0")
    e("s_sub_u32 s14, %d, s3"%(640*8192)); e("s_mov_b32 s15, 0x20000")
    e("s_mul_i32 s3, s39, %d"%(128*1280)); e("s_add_u32 s16, s16, s3"); e("s_addc_u32 s17, s17, 0")
    e("s_mov_b32 s18, %d"%(128*1280)); e("s_mov_b32 s19, 0x20000")
    e("s_mov_b32 s22, 2211840"); e("s_mov_b32 s23, 0x20000")
    e("s_mov_b32 s26, 2211840"); e("s_mov_b32 s27, 0x20000")
    e("s_mov_b32 s30, 0x100000"); e("s_mov_b32 s31, 0x20000")
    e("s_mul_i32 s3, s38, 1280"); e("s_add_u32 s32, s32, s3"); e("s_addc_u32 s33, s33, 0")
def sel_oob(v,cond_vcc=True):
    e("v_mov_b32 v11, 0x80000000"); nop(0); e("v_cndmask_b32 v%d, v11, v%d, vcc"%(v,v))
def y_addr(d,t):
    e("v_lshrrev_b32 v%d, 2, v0"%d); e("s_mul_i32 s3, s38, 40"); e("v_add_u32 v%d, s3, v%d"%(d,d))
    e("v_lshlrev_b32 v%d, 13, v%d"%(d,d)); e("s_lshl_b32 s3, s42, 6"); e("v_add_u32 v%d, s3, v%d"%(d,d))
    e("v_and_b32 v%d, 3, v0"%t); e("v_lshlrev_b32 v%d, 4, v%d"%(t,t)); e("v_add_u32 v%d, v%d, v%d"%(d,d,t))
def zero_phase():
    for r in range(12,16): e("v_mov_b32 v%d, 0"%r)
    y_addr(9,10)
    e("v_cmp_gt_u32 vcc, 160, v0"); sel_oob(9)
    e("v_subrev_u32 v10, 160, v0"); e("v_lshlrev_b32 v16, 4, v10"); e("s_lshl_b32 s3, s2, 6"); e("s_add_u32 s3, s3, %d"%W_H)
    e("v_add_u32 v16, s3, v16"); e("s_cmp_lt_u32 s2, 80"); e("s_cselect_b32 s45, 4, 0")
    e("v_cmp_gt_u32 vcc, s45, v10"); nop(1); e("v_cndmask_b32 v9, v9, v16, vcc")
    g.vmem("buffer_store_dwordx4 v[12:15], v9, s[28:31], 0 offen sc1","z")
    e("s_sub_u32 s45, s2, 80"); e("v_lshrrev_b32 v9, 3, v0"); e("v_mul_u32_u24 v9, 54, v9"); e("v_add_u32 v9, s45, v9")
    e("v_lshlrev_b32 v9, 7, v9"); e("v_and_b32 v10, 7, v0"); e("v_lshlrev_b32 v10, 4, v10"); e("v_add_u32 v9, v9, v10")
    e("v_add_u32 v9, %d, v9"%W_Z); e("s_cmp_lt_u32 s45, 54"); e("s_cselect_b32 s45, 320, 0")
    e("v_cmp_gt_u32 vcc, s45, v0"); sel_oob(9)
    g.vmem("buffer_store_dwordx4 v[12:15], v9, s[28:31], 0 offen sc1","z")
    e("s_lshl_b32 s3, s38, 7"); e("s_add_u32 s3, s3, s42"); e("s_lshl_b32 s3, s3, 3"); e("s_add_u32 s47, s3, %d"%W_ML)
    e("v_mov_b32 v9, s47"); e("v_cmp_eq_u32 vcc, 0, v0"); sel_oob(9)
    g.vmem("buffer_store_dwordx2 v[12:13], v9, s[28:31], 0 offen sc1","z")
def wq_issue(i,area):
    e("s_add_u32 s3, s41, %d"%(8*i)); e("s_lshl_b32 s45, s3, 18")
    e("s_cmp_lt_u32 s3, 20"); e("s_cselect_b32 s45, s45, 0x80000000")
    e("v_lshlrev_b32 v9, 16, v3"); e("v_lshl_add_u32 v9, v4, 4, v9"); e("v_or_b32 v9, s45, v9")
    w_loads(area,9,12,70,"wq%d"%i)
def wo_issue(i,area):
    e("s_and_b32 s3, s41, 3"); e("s_mul_i32 s45, s3, %d"%(32*1280)); e("s_lshr_b32 s3, s41, 2"); e("s_mul_i32 s3, s3, 3")
    e("s_add_u32 s3, s3, %d"%i); e("s_lshl_b32 s46, s3, 8"); e("s_add_u32 s45, s45, s46")
    e("s_cmp_lt_u32 s3, 5"); e("s_cselect_b32 s45, s45, 0x80000000")
    e("v_mul_u32_u24 v9, %d, v3"%(8*1280)); e("v_lshl_add_u32 v9, v4, 4, v9"); e("v_add_u32 v9, s45, v9")
    w_loads(area,9,16,78,"wo%d"%i)
def ffn_issue(which,area):
    e("s_sub_u32 s48, s2, 80"); e("s_cmp_lt_u32 s48, 54"); e("s_cselect_b32 s46, 5, 0"); e("s_cmp_lt_u32 s41, s46")
    e("s_cselect_b32 s46, 0, 0x80000000")
    if which==1:
        e("v_lshrrev_b32 v9, 2, v4"); e("v_lshlrev_b32 v9, 2, v9"); e("v_add_u32 v9, v9, v3"); e("v_mul_u32_u24 v9, %d, v9"%(8*3456))
        e("v_and_b32 v10, 3, v4"); e("v_lshl_add_u32 v9, v10, 4, v9")
        e("s_mul_i32 s45, s41, %d"%(128*3456)); e("s_lshl_b32 s3, s48, 6"); e("s_add_u32 s45, s45, s3")
    else:
        e("v_mul_u32_u24 v9, %d, v3"%(8*1280)); e("v_lshl_add_u32 v9, v4, 4, v9")
        e("s_mul_i32 s45, s48, %d"%(32*1280)); e("s_lshl_b32 s3, s41, 8"); e("s_add_u32 s45, s45, s3")
    e("s_cmp_eq_u32 s46, 0"); e("s_cselect_b32 s45, s45, s46")
    e("v_add_u32 v9, s45, v9")
    w_loads(area,9,20 if which==1 else 24,86 if which==1 else 78,"w%d"%which)
def qk(area,dst):
    d=12
    for q in range(4):
        for i in range(8):
            c="0" if q==0 else "v%d"%(d+i)
            e("v_dot2_f32_bf16 v%d, v%d, v%d, %s"%(d+i,area+4*i+q,28+q,c))
    nop(3)
    for i in range(4):
        e("v_add_f32_dpp v%d, v%d, v%d row_ror:8 row_mask:0xf bank_mask:0x3"%(d+i,d+i,d+i))
        e("v_add_f32_dpp v%d, v%d, v%d row_ror:8 row_mask:0xf bank_mask:0xc"%(d+i,d+i+4,d+i+4))
    nop(1)
    for i in range(2):
        e("v_add_f32_dpp v%d, v%d, v%d row_shl:4 row_mask:0xf bank_mask:0x5"%(d+i,d+i,d+i))
        e("v_add_f32_dpp v%d, v%d, v%d row_shr:4 row_mask:0xf bank_mask:0xa"%(d+i,d+i+2,d+i+2))
    nop(1)
    for i in range(2):
        e("v_add_f32_dpp v%d, v%d, v%d quad_perm:[2,3,0,1] row_mask:0xf bank_mask:0xf"%(d+4+i,d+i,d+i))
    nop(0)
    e("v_cndmask_b32 v%d, v%d, v%d, s[54:55]"%(d,d+4,d+5)); nop(1)
    e("v_add_f32_dpp v%d, v%d, v%d quad_perm:[1,0,3,2] row_mask:0xf bank_mask:0xf"%(d,d,d))
    bf16r(d,d); e("v_mul_f32 v%d, 0x3db504f3, v%d"%(d,d)); bf16r(d,d)
    e("v_mul_f32 v%d, 0x3fb8aa3b, v%d"%(dst,d))
```

```python
from g1 import *
import g1
def main():
    prologue(); stamp(0)
    for k in range(1,7):
        if DBG: e("s_mov_b32 s%d, s96"%SREG[k])
    zero_phase()
    e("v_lshlrev_b32 v9, 2, v1")
    for i in range(5): g.vmem("global_load_dword v%d, v9, s[32:33] offset:%d"%(24+i,256*i),"x")
    wq_issue(0,B0); wq_issue(1,B1); wq_issue(2,B2)
    kv_loads(A0,4,0,"K0"); kv_loads(A1,4,1,"K1"); kv_loads(A2,4,2,"K2")
    g.wait("x")
    vals=list(range(DD,DD+10))
    for i in range(5):
        e("v_lshlrev_b32 v%d, 16, v%d"%(DD+2*i,24+i)); e("v_and_b32 v%d, 0xffff0000, v%d"%(DD+2*i+1,24+i))
    layernorm(vals,False,12)
    e("v_lshlrev_b32 v9, 2, v1")
    for i in range(5):
        e("v_cvt_pk_bf16_f32 v%d, v%d, v%d"%(24+i,DD+2*i,DD+2*i+1))
        e("ds_write_b32 v9, v%d offset:%d"%(24+i,L_LN+256*i))
    e("s_waitcnt lgkmcnt(0)")
    for i,ar in enumerate((B0,B1,B2)):
        e("s_add_u32 s3, s41, %d"%(8*i)); e("s_cmp_lt_u32 s3, 20"); e("s_cselect_b32 s3, s3, 0"); e("s_lshl_b32 s3, s3, 6")
        e("v_lshlrev_b32 v9, 4, v3"); e("v_add_u32 v9, s3, v9"); e("ds_read_b128 v[24:27], v9 offset:%d"%L_LN)
        g.wait("wq%d"%i); e("s_waitcnt lgkmcnt(0)")
        tile_mfma(ar,24,DD,i==0)
    e("s_lshl_b32 s3, s41, 9"); e("v_lshlrev_b32 v10, 5, v4"); e("v_add_u32 v10, s3, v10"); e("v_add_u32 v10, %d, v10"%L_QP)
    d_write(DD,10)
    e("s_waitcnt lgkmcnt(0)")
    kv_loads(DD,4,3,"K3"); kv_loads(B0,8,0,"V0"); kv_loads(B1,8,1,"V1"); kv_loads(B2,8,2,"V2")
    e("s_barrier")
    e("s_cmp_lg_u32 s41, 0"); e("s_cbranch_scc1 L_nocnt")
    e("v_mov_b32 v9, 0"); e("v_mov_b32 v10, 1"); e("s_mov_b64 exec, 1")
    e("global_atomic_add v9, v10, s[36:37] sc1"); e("s_mov_b64 exec, -1")
    g.lbl("L_nocnt")
    e("s_cmp_ge_u32 s41, 2"); e("s_cbranch_scc1 L_noq")
    e("v_lshlrev_b32 v9, 2, v0")
    for i in range(8): e("ds_read_b32 v%d, v9 offset:%d"%(12+i,L_QP+512*i))
    e("s_waitcnt lgkmcnt(0)")
    for i in range(1,8): e("v_add_f32 v12, v12, v%d"%(12+i))
    e("v_cvt_pk_bf16_f32 v12, v12, v12"); e("v_lshlrev_b32 v9, 1, v0"); e("ds_write_b16 v9, v12 offset:%d"%L_Q)
    e("s_waitcnt lgkmcnt(0)")
    g.lbl("L_noq")
    e("s_barrier")
    e("v_lshlrev_b32 v9, 4, v4"); e("ds_read_b128 v[28:31], v9 offset:%d"%L_Q); e("s_waitcnt lgkmcnt(0)")
    stamp(1)
    g.wait("K0"); qk(A0,5); wo_issue(0,A0)
    g.wait("K1"); qk(A1,6); wo_issue(1,A1)
    g.wait("K2"); qk(A2,7); kv_loads(A2,8,3,"V3")
    g.wait("K3"); qk(DD,8)
    stamp(2)
    e("v_max_f32 v9, v5, v6"); e("v_max3_f32 v9, v9, v7, v8")
    wavered("v_max_f32",9); e("v_readlane_b32 s50, v9, 63"); nop(1)
    for i in range(4): e("v_subrev_f32 v%d, s50, v%d"%(5+i,5+i))
    for i in range(4): e("v_exp_f32 v%d, v%d"%(5+i,5+i))
    nop(0)
    e("v_add_f32 v9, v5, v6"); e("v_add_f32 v10, v7, v8"); e("v_add_f32 v9, v9, v10")
    e("v_lshrrev_b32 v10, 1, v4"); e("v_lshlrev_b32 v10, 1, v10"); e("v_lshl_add_u32 v10, v3, 4, v10")
    e("s_lshl_b32 s3, s41, 8"); e("v_add_u32 v10, s3, v10")
    for i in range(4):
        e("v_cvt_pk_bf16_f32 v%d, v%d, v%d"%(5+i,5+i,5+i)); e("ds_write_b16 v10, v%d offset:%d"%(5+i,L_P+64*i))
    wavered("v_add_f32",9); e("v_readlane_b32 s51, v9, 63"); nop(1)
    e("v_mov_b32 v12, s50"); e("v_mov_b32 v13, s51"); e("v_mul_f32 v13, 0.5, v13")
    e("s_lshl_b32 s3, s41, 3"); e("v_mov_b32 v9, s3"); e("s_mov_b64 exec, 1")
    e("ds_write_b64 v9, v[12:13] offset:%d"%L_ML); e("s_mov_b64 exec, -1")
    e("v_lshlrev_b32 v31, 4, v3"); e("s_lshl_b32 s3, s41, 8"); e("v_add_u32 v31, s3, v31")
    e("s_waitcnt lgkmcnt(0)")
    ACC=DD
    def pv(i,ar,tag):
        e("ds_read_b128 v[24:27], v31 offset:%d"%(L_P+64*i)); g.wait(tag); e("s_waitcnt lgkmcnt(0)")
        tile_mfma(ar,24,ACC,i==0)
    pv(0,B0,"V0"); wo_issue(2,B0)
    e("v_mov_b32 v9, 0"); g.vmem("global_load_dword v30, v9, s[36:37] sc1","cnt")
    pv(1,B1,"V1"); pv(2,B2,"V2")
    g.wait("wo1"); preperm(A0,B1); preperm(A1,B2)
    ffn_issue(1,A0); ffn_issue(2,A1)
    pv(3,A2,"V3")
    stamp(3)
    e("s_lshl_b32 s3, s41, 9"); e("v_lshlrev_b32 v10, 5, v4"); e("v_add_u32 v10, s3, v10"); e("v_add_u32 v10, %d, v10"%L_QP)
    d_write(ACC,10)
    g.wait("wo2"); preperm(B0,A2)
    e("s_waitcnt lgkmcnt(0)"); e("s_barrier")
    T=B0
    e("v_mov_b32 v9, 0")
    for i in range(4): e("ds_read_b128 %s, v9 offset:%d"%(rng(T+4*i,4),L_ML+16*i))
    e("s_and_b32 s3, s41, 3"); e("s_lshl_b32 s3, s3, 5"); e("v_and_b32 v20, 31, v1"); e("v_add_u32 v20, s3, v20")
    e("v_lshlrev_b32 v9, 2, v20")
    for i in range(8): e("ds_read_b32 v%d, v9 offset:%d"%(12+i,L_QP+512*i))
    e("s_waitcnt lgkmcnt(8)")
    e("v_max3_f32 v10, v%d, v%d, v%d"%(T,T+2,T+4)); e("v_max3_f32 v11, v%d, v%d, v%d"%(T+6,T+8,T+10))
    e("v_max3_f32 v10, v10, v%d, v%d"%(T+12,T+14)); e("v_max_f32 v10, v10, v11")
    for i in range(8): e("v_sub_f32 v%d, v%d, v10"%(T+2*i,T+2*i))
    for i in range(8): e("v_exp_f32 v%d, v%d"%(T+2*i,T+2*i))
    nop(0)
    e("v_mul_f32 v11, v%d, v%d"%(T,T+1)); e("v_mul_f32 v21, v%d, v%d"%(T+2,T+3))
    for i in range(2,8): e("v_fmac_f32 v%d, v%d, v%d"%(11 if i%2==0 else 21,T+2*i,T+2*i+1))
    e("v_add_f32 v11, v11, v21")
    e("s_waitcnt lgkmcnt(0)")
    e("v_mul_f32 v12, v12, v%d"%T); e("v_mul_f32 v13, v13, v%d"%(T+2))
    e("v_rcp_f32 v22, v11")
    for i in range(2,8): e("v_fmac_f32 v%d, v%d, v%d"%(12+(i&1),12+i,T+2*i))
    e("v_add_f32 v12, v12, v13"); e("v_mul_f32 v12, v12, v22")
    e("v_cvt_pk_bf16_f32 v12, v12, v12"); e("v_lshlrev_b32 v9, 1, v20"); e("ds_write_b16 v9, v12 offset:%d"%L_Q)
    e("s_cmp_lg_u32 s41, 0"); e("s_cbranch_scc1 L_noo")
    e("v_or_b32 v14, 1, v10"); e("v_or_b32 v15, 1, v11"); e("v_mov_b32 v9, s47"); e("v_cmp_eq_u32 vcc, 0, v0"); sel_oob(9)
    e("buffer_store_dwordx2 v[14:15], v9, s[28:31], 0 offen sc1")
    g.lbl("L_noo")
    e("s_and_b32 s3, s41, 3"); e("s_lshl_b32 s3, s3, 6"); e("v_lshlrev_b32 v9, 4, v3"); e("v_add_u32 v9, s3, v9")
    e("s_waitcnt lgkmcnt(0)")
    e("ds_read_b128 v[24:27], v9 offset:%d"%L_Q)
    e("s_and_b32 s3, s41, 3"); e("s_mul_i32 s3, s3, 3072"); e("s_lshr_b32 s45, s41, 2"); e("s_mul_i32 s45, s45, 1536")
    e("s_add_u32 s3, s3, s45"); e("s_add_u32 s3, s3, %d"%L_YP); e("v_lshlrev_b32 v10, 5, v4"); e("v_add_u32 v10, s3, v10")
    e("v_add_u32 v22, 512, v10"); e("v_add_u32 v23, 1024, v10")
    e("s_waitcnt lgkmcnt(0)")
    mfma_only(B1,24,DD); mfma_only(B2,24,B0)
    d_write(DD,10,short=True); mfma_only(A2,24,B1); d_write(B0,22,short=True); d_write(B1,23)
    e("s_waitcnt lgkmcnt(0)"); e("s_barrier")
    y_addr(9,10); e("v_cmp_gt_u32 vcc, 160, v0"); sel_oob(9)
    e("s_cmp_ge_u32 s41, 3"); e("s_cbranch_scc1 L_noy")
    e("v_lshlrev_b32 v10, 4, v0")
    for i in range(4): e("ds_read_b128 %s, v10 offset:%d"%(rng(DD+4*i,4),L_YP+3072*i))
    e("s_waitcnt lgkmcnt(0)")
    for x in range(4):
        e("v_add_f32 v%d, v%d, v%d"%(DD+x,DD+x,DD+4+x)); e("v_add_f32 v%d, v%d, v%d"%(DD+8+x,DD+8+x,DD+12+x))
        e("v_add_f32 v%d, v%d, v%d"%(DD+x,DD+x,DD+8+x)); e("v_or_b32 v%d, 1, v%d"%(DD+x,DD+x))
    e("buffer_store_dwordx4 %s, v9, s[28:31], 0 offen sc1"%rng(DD,4))
    g.lbl("L_noy")
    stamp(4)
    e("s_cmp_ge_u32 s2, 174"); e("s_cbranch_scc1 L_end")
    g.wait("cnt"); e("s_mov_b32 s52, 0")
    g.lbl("L_cchk")
    e("v_readfirstlane_b32 s3, v30"); e("s_cmp_eq_u32 s3, 256"); e("s_cbranch_scc1 L_cok")
    e("s_add_u32 s52, s52, 1"); e("s_cmp_gt_u32 s52, %d"%POLLMAX); e("s_cbranch_scc1 L_cok")
    e("v_mov_b32 v9, 0"); e("global_load_dword v30, v9, s[36:37] sc1"); e("s_waitcnt vmcnt(0)"); e("s_branch L_cchk")
    g.lbl("L_cok")
    e("s_cmp_ge_u32 s2, 134"); e("s_cbranch_scc1 L_hopC")
    e("s_cmp_ge_u32 s2, 80"); e("s_cbranch_scc1 L_ffn")
    hopA(); ffn(); hopC()
    g.lbl("L_end"); stamp_out(); g.lbl("L_end2"); e("s_endpgm")
POLLMAX=20000
def poll(loads,words,extra=None):
    lp=g.newlbl("poll"); dn=g.newlbl("done")
    e("s_mov_b32 s52, 0"); g.lbl(lp)
    for l in loads: e(l)
    e("s_waitcnt vmcnt(0)")
    e("v_and_b32 v11, v%d, v%d"%(words[0],words[1]))
    for w in words[2:]: e("v_and_b32 v11, v11, v%d"%w)
    if extra is not None: e("v_or_b32 v11, v11, v%d"%extra)
    e("v_and_b32 v11, 1, v11"); e("v_cmp_ne_u32 vcc, 1, v11"); e("s_add_u32 s52, s52, 1")
    e("s_cmp_gt_u32 s52, %d"%POLLMAX); e("s_cbranch_scc1 %s"%dn)
    nop(1); e("s_cmp_eq_u64 vcc, 0"); e("s_cbranch_scc0 %s"%lp)
    g.lbl(dn)
    stamp(5)
def hopA():
    e("s_cmp_ge_u32 s2, 40"); e("s_cselect_b32 s48, 1, 0")
    e("s_lshl_b32 s3, s2, 13"); e("v_lshlrev_b32 v9, 4, v0"); e("v_add_u32 v9, s3, v9")
    e("s_lshl_b32 s3, s48, 10"); e("s_add_u32 s3, s3, %d"%W_ML)
    e("v_lshrrev_b32 v10, 4, v0"); e("v_lshlrev_b32 v10, 5, v10"); e("v_add_u32 v10, s3, v10")
    e("v_lshrrev_b32 v28, 2, v0"); e("v_lshlrev_b32 v28, 3, v28"); e("v_add_u32 v28, s3, v28")
    e("s_lshl_b32 s3, s48, 0"); e("s_sub_u32 s3, s3, s38"); e("s_mul_i32 s3, s3, 1280")
    e("s_mul_i32 s45, s48, 40"); e("s_sub_u32 s45, s2, s45"); e("s_lshl_b32 s45, s45, 5"); e("s_add_u32 s3, s3, s45")
    e("s_ashr_i32 s45, s3, 31"); e("s_add_u32 s58, s32, s3"); e("s_addc_u32 s59, s33, s45")
    e("v_lshlrev_b32 v29, 1, v4"); e("global_load_ushort v27, v29, s[58:59]")
    poll(["buffer_load_dwordx4 v[12:15], v9, s[28:31], 0 offen sc1","buffer_load_dwordx4 v[16:19], v10, s[28:31], 0 offen sc1",
          "buffer_load_dwordx4 v[20:23], v10, s[28:31], 0 offen offset:16 sc1","buffer_load_dwordx2 v[24:25], v28, s[28:31], 0 offen sc1"],
         list(range(12,26)))
    e("v_max3_f32 v10, v16, v18, v20"); e("v_max_f32 v10, v10, v22")
    for r in (16,18,20,22,24): e("v_sub_f32 v%d, v%d, v10"%(r,r))
    for r in (16,18,20,22,24): e("v_exp_f32 v%d, v%d"%(r,r))
    nop(0)
    e("v_mul_f32 v11, v16, v17"); e("v_fmac_f32 v11, v18, v19"); e("v_fmac_f32 v11, v20, v21"); e("v_fmac_f32 v11, v22, v23")
    e("v_rcp_f32 v11, v11"); e("v_mul_f32 v24, v24, v25"); nop(0); e("v_mul_f32 v24, v24, v11")
    for x in range(4): e("v_mul_f32 v%d, v%d, v24"%(12+x,12+x))
    for r in (4,8):
        nop(1)
        for x in range(4): e("v_add_f32_dpp v%d, v%d, v%d row_ror:%d row_mask:0xf bank_mask:0xf"%(12+x,12+x,12+x,r))
    e("v_lshrrev_b32 v9, 4, v0"); e("v_lshlrev_b32 v9, 6, v9"); e("v_lshl_add_u32 v9, v4, 4, v9")
    e("v_cmp_gt_u32 vcc, 4, v4"); e("s_and_saveexec_b64 s[94:95], vcc")
    e("ds_write_b128 v9, v[12:15] offset:%d"%L_T); e("s_mov_b64 exec, -1")
    e("s_waitcnt lgkmcnt(0)"); e("s_barrier")
    e("s_cmp_lg_u32 s41, 0"); e("s_cbranch_scc1 L_end")
    e("v_lshlrev_b32 v9, 9, v3"); e("v_lshl_add_u32 v9, v4, 2, v9")
    for i in range(8): e("ds_read_b32 v%d, v9 offset:%d"%(12+i,L_T+64*i))
    e("s_waitcnt lgkmcnt(0)")
    for i in range(1,8): e("v_add_f32 v12, v12, v%d"%(12+i))
    xrow(12,13)
    bf16r(12,12); e("v_lshlrev_b32 v27, 16, v27"); e("v_add_f32 v12, v12, v27"); bf16r(12,12); e("v_or_b32 v12, 1, v12")
    e("s_lshl_b32 s3, s2, 6"); e("s_add_u32 s3, s3, %d"%W_H); e("v_lshlrev_b32 v9, 2, v4"); e("v_add_u32 v9, s3, v9")
    e("v_cmp_gt_u32 vcc, 16, v1"); sel_oob(9)
    e("buffer_store_dword v12, v9, s[28:31], 0 offen sc1")
    e("s_branch L_end")
def xrow(v,t,only32=False):
    if not only32:
        e("v_mov_b32 v%d, v%d"%(t,v)); nop(1); e("v_permlane16_swap_b32 v%d, v%d"%(v,t)); nop(1); e("v_add_f32 v%d, v%d, v%d"%(v,v,t))
    e("v_mov_b32 v%d, v%d"%(t,v)); nop(1); e("v_permlane32_swap_b32 v%d, v%d"%(v,t)); nop(1); e("v_add_f32 v%d, v%d, v%d"%(v,v,t))
def ffn():
    g.lbl("L_ffn")
    e("s_cmp_ge_u32 s41, 5"); e("s_cbranch_scc1 L_ffn_idle")
    e("s_sub_u32 s48, s2, 80")
    e("v_lshrrev_b32 v9, 5, v1"); e("v_mul_u32_u24 v9, 2560, v9"); e("v_and_b32 v10, 31, v1"); e("v_lshl_add_u32 v9, v10, 4, v9")
    e("v_add_u32 v9, %d, v9"%W_H)
    vals=list(range(DD,DD+20))
    poll(["buffer_load_dwordx4 %s, v9, s[28:31], 0 offen offset:%d sc1"%(rng(DD+4*i,4),512*i) for i in range(5)],vals)
    for v in vals: e("v_and_b32 v%d, 0xffff0000, v%d"%(v,v))
    layernorm(vals,True,12)
    e("v_lshrrev_b32 v9, 5, v1"); e("v_mul_u32_u24 v9, 1280, v9"); e("v_and_b32 v10, 31, v1"); e("v_lshl_add_u32 v9, v10, 3, v9")
    for i in range(5):
        e("v_cvt_pk_bf16_f32 v12, v%d, v%d"%(DD+4*i,DD+4*i+1)); e("v_cvt_pk_bf16_f32 v13, v%d, v%d"%(DD+4*i+2,DD+4*i+3))
        e("ds_write_b64 v9, v[12:13] offset:%d"%(L_LN+256*i)); nop(0)
    e("s_waitcnt lgkmcnt(0)")
    e("v_and_b32 v9, 1, v4"); e("v_mul_u32_u24 v9, 1280, v9"); e("v_lshrrev_b32 v10, 2, v4"); e("v_lshl_add_u32 v9, v10, 6, v9")
    e("v_lshl_add_u32 v9, v3, 4, v9"); e("s_lshl_b32 s3, s41, 8"); e("v_add_u32 v9, s3, v9")
    e("ds_read_b128 v[24:27], v9 offset:%d"%L_LN); e("s_waitcnt lgkmcnt(0)")
    tile_mfma(A0,24,DD,True)
    e("v_lshrrev_b32 v10, 2, v4"); e("v_cmp_eq_u32 vcc, v10, v3")
    e("v_lshlrev_b32 v9, 8, v10"); e("v_and_b32 v10, 3, v4"); e("v_lshl_add_u32 v9, v10, 5, v9")
    e("s_lshl_b32 s3, s41, 10"); e("v_add_u32 v9, s3, v9"); e("v_add_u32 v9, %d, v9"%L_T)
    nop(7); e("s_and_saveexec_b64 s[94:95], vcc")
    for b in range(2):
        for c in range(0,8,2):
            e("ds_write2_b32 v9, v%d, v%d offset0:%d offset1:%d"%(DD+4*c+b,DD+4*(c+1)+b,32*b+c,32*b+c+1))
    e("s_mov_b64 exec, -1"); e("s_waitcnt lgkmcnt(0)")
    g.lbl("L_ffn_idle")
    e("s_barrier")
    e("s_cmp_ge_u32 s41, 5"); e("s_cbranch_scc1 L_end")
    e("v_lshlrev_b32 v9, 2, v1")
    for i in range(20): e("ds_read_b32 v%d, v9 offset:%d"%(DD+i,L_T+256*i))
    e("s_waitcnt lgkmcnt(0)")
    for i in range(10): e("v_add_f32 v%d, v%d, v%d"%(DD+i,DD+i,DD+10+i))
    for i in range(5): e("v_add_f32 v%d, v%d, v%d"%(DD+i,DD+i,DD+5+i))
    for i in range(1,5): e("v_add_f32 v%d, v%d, v%d"%(DD,DD,DD+i))
    e("v_max_f32 v%d, 0, v%d"%(DD,DD)); e("v_cvt_pk_bf16_f32 v12, v%d, v%d"%(DD,DD))
    e("v_lshlrev_b32 v9, 1, v1"); e("ds_write_b16 v9, v12 offset:%d"%L_Q); e("s_waitcnt lgkmcnt(0)")
    e("v_and_b32 v9, 1, v4"); e("v_lshlrev_b32 v9, 6, v9"); e("v_lshl_add_u32 v9, v3, 4, v9")
    e("ds_read_b128 v[24:27], v9 offset:%d"%L_Q); e("s_waitcnt lgkmcnt(0)")
    tile_mfma(A1,24,DD,True)
    e("v_mul_u32_u24 v9, 20, v3"); e("v_lshrrev_b32 v10, 2, v4"); e("v_add_u32 v9, v9, v10"); e("s_lshl_b32 s3, s41, 2")
    e("v_add_u32 v9, s3, v9"); e("v_mul_u32_u24 v9, 54, v9"); e("v_add_u32 v9, s48, v9"); e("v_lshlrev_b32 v9, 7, v9")
    e("v_and_b32 v10, 3, v4"); e("v_lshl_add_u32 v9, v10, 5, v9"); e("v_add_u32 v9, %d, v9"%W_Z)
    e("v_cmp_gt_u32 vcc, 32, v1"); sel_oob(9)
    e("v_cmp_eq_u32 vcc, 1, v3"); nop(7)
    for c in range(8):
        e("v_cndmask_b32 v%d, v%d, v%d, vcc"%(12+c,DD+4*c,DD+4*c+1));
    for c in range(8): e("v_or_b32 v%d, 1, v%d"%(12+c,12+c))
    e("buffer_store_dwordx4 v[12:15], v9, s[28:31], 0 offen sc1")
    e("buffer_store_dwordx4 v[16:19], v9, s[28:31], 0 offen offset:16 sc1")
    e("s_branch L_end")
def hopC():
    g.lbl("L_hopC")
    e("s_sub_u32 s48, s2, 134")
    e("s_mul_i32 s3, s48, 6912"); e("s_add_u32 s3, s3, %d"%W_Z); e("v_lshlrev_b32 v9, 4, v0"); e("v_add_u32 v9, s3, v9")
    e("v_cmp_gt_u32 vcc, 432, v0"); sel_oob(9)
    e("v_cmp_le_u32 vcc, 432, v0"); nop(1); e("v_cndmask_b32 v28, 0, 1, vcc")
    e("s_lshl_b32 s3, s48, 7"); e("s_add_u32 s3, s3, %d"%W_H); e("v_and_b32 v10, 31, v1"); e("v_lshl_add_u32 v10, v10, 2, s3")
    e("v_mov_b32 v17, -1");
    poll(["buffer_load_dwordx4 v[12:15], v9, s[28:31], 0 offen sc1"],[12,13,14,15],28)
    e("buffer_load_dword v27, v10, s[28:31], 0 offen sc1")
    nop(1)
    for x in range(4): e("v_add_f32_dpp v%d, v%d, v%d row_ror:8 row_mask:0xf bank_mask:0xf"%(12+x,12+x,12+x))
    e("v_lshrrev_b32 v9, 4, v0"); e("v_lshlrev_b32 v9, 7, v9"); e("v_lshl_add_u32 v9, v4, 4, v9")
    e("v_cmp_gt_u32 vcc, 8, v4"); e("s_and_saveexec_b64 s[94:95], vcc")
    e("ds_write_b128 v9, v[12:15] offset:%d"%L_T); e("s_mov_b64 exec, -1")
    e("s_waitcnt lgkmcnt(0)"); e("s_barrier")
    e("s_cmp_lg_u32 s41, 0"); e("s_cbranch_scc1 L_end")
    e("v_lshrrev_b32 v9, 5, v1"); e("v_lshlrev_b32 v9, 11, v9"); e("v_and_b32 v11, 31, v1"); e("v_lshl_add_u32 v9, v11, 2, v9")
    for i in range(16): e("ds_read_b32 v%d, v9 offset:%d"%(DD+i,L_T+128*i))
    e("s_waitcnt lgkmcnt(0)")
    for i in range(8): e("v_add_f32 v%d, v%d, v%d"%(DD+i,DD+i,DD+8+i))
    for i in range(4): e("v_add_f32 v%d, v%d, v%d"%(DD+i,DD+i,DD+4+i))
    for i in range(1,4): e("v_add_f32 v%d, v%d, v%d"%(DD,DD,DD+i))
    xrow(DD,DD+1,True)
    e("s_waitcnt vmcnt(0)")
    bf16r(DD,DD); e("v_and_b32 v27, 0xffff0000, v27"); e("v_add_f32 v%d, v%d, v27"%(DD,DD))
    e("v_cvt_pk_bf16_f32 v12, v%d, v%d"%(DD,DD))
    e("s_lshl_b32 s3, s48, 6"); e("v_lshlrev_b32 v9, 1, v11"); e("v_add_u32 v9, s3, v9")
    e("s_mov_b64 exec, 0xffffffff"); e("global_store_short v9, v12, s[34:35]"); e("s_mov_b64 exec, -1")
HDR=open('cdna_kernels/%s.s.ref'%NAME).read().split("; @launch")[0]
def build(path):
    main()
    out=HDR+"; @launch grid=(256,1,1) block=(512,1,1) lds=%d\n"%L_SIZE
    out+='.amdgcn_target "amdgcn-amd-amdhsa--gfx950"\n.text\n.globl %s_kernel\n.p2align 8\n.type %s_kernel,@function\n%s_kernel:\n'%(NAME,NAME,NAME)
    out+="\n".join(g.L)+"\n"
    out+='.section .rodata,"a"\n.p2align 6\n.amdhsa_kernel %s_kernel\n  .amdhsa_next_free_vgpr 256\n  .amdhsa_next_free_sgpr 102\n  .amdhsa_accum_offset 256\n  .amdhsa_group_segment_fixed_size 0\n  .amdhsa_kernarg_size 88\n  .amdhsa_user_sgpr_count 2\n  .amdhsa_user_sgpr_kernarg_segment_ptr 1\n  .amdhsa_system_sgpr_workgroup_id_x 1\n.end_amdhsa_kernel\n'%NAME
    open(path,'w').write(out)
if __name__=="__main__":
    import sys
    build(sys.argv[1] if len(sys.argv)>1 else 'cdna_kernels/%s.s'%NAME)
```

```python
import os
NAME="sequential_preLN__gqa_block_cached__dense_activation_relu__decode"
class G:
    def __init__(s):
        s.L=[]; s.vm=[]; s.lab=0
    def e(s,t): s.L.append("    "+t)
    def lbl(s,t): s.L.append(t+":")
    def newlbl(s,p):
        s.lab+=1; return "L_%s_%d"%(p,s.lab)
    def vmem(s,t,tag=None):
        s.e(t); s.vm.append(tag)
    def wait(s,tag):
        idx=max(i for i,t in enumerate(s.vm) if t==tag)
        n=len(s.vm)-1-idx
        assert n<=63,(tag,n)
        s.e("s_waitcnt vmcnt(%d)"%n)
    def waitall(s):
        s.e("s_waitcnt vmcnt(0)")
import os
g=G(); e=g.e
DBG=os.environ.get("DBG")
SREG=[96,97,100,101,68,69,49,53]
def stamp(k):
    if not DBG: return
    e("s_memrealtime s[98:99]"); e("s_waitcnt lgkmcnt(0)"); e("s_mov_b32 s%d, s98"%SREG[k])
def stamp_out():
    if not DBG: return
    stamp(7)
    e("s_cmp_lg_u32 s41, 0"); e("s_cbranch_scc1 L_end2")
    e("s_lshl_b32 s3, s2, 5"); e("s_add_u32 s3, s3, 0xF0000")
    e("v_mov_b32 v9, s3"); e("s_mov_b64 exec, 1")
    for k in range(8):
        e("v_mov_b32 v10, s%d"%SREG[k])
        e("buffer_store_dword v10, v9, s[28:31], 0 offen offset:%d"%(4*k))
        e("s_waitcnt vmcnt(0)")
A0,A1,A2,B0,B1,B2,DD=32,64,96,128,160,192,224
L_LN=0; L_QP=2560; L_Q=L_QP+4096; L_P=L_Q+256; L_ML=L_P+2048; L_YP=L_ML+128; L_T=L_YP+4*768*4
L_SIZE=L_T+8192
W_Y=0; W_ML=0xA0000; W_H=0xA1000; W_Z=0xA4000
OOB=0x80000000
KVFLAG=os.environ.get("KVFLAG"," nt")
def rng(a,n): return "v[%d:%d]"%(a,a+n-1)
def nop(n): e("s_nop %d"%n)
def bf16r(d,a):
    e("v_cvt_pk_bf16_f32 v%d, v%d, v%d"%(d,a,a)); e("v_and_b32 v%d, 0xffff0000, v%d"%(d,d))
def rowred(op,v):
    for r in (8,4,2,1):
        nop(1); e("%s_dpp v%d, v%d, v%d row_ror:%d row_mask:0xf bank_mask:0xf"%(op,v,v,v,r))
def wavered(op,v,half=False):
    rowred(op,v)
    nop(1); e("%s_dpp v%d, v%d, v%d row_bcast:15 row_mask:0xa bank_mask:0xf"%(op,v,v,v))
    if not half:
        nop(1); e("%s_dpp v%d, v%d, v%d row_bcast:31 row_mask:0xc bank_mask:0xf"%(op,v,v,v))
    nop(1)
def tile_loads(area,voff,srd,soffs,tag,flag=""):
    for i in range(8):
        so,io=soffs[i]
        g.vmem("buffer_load_dwordx4 %s, v%d, s[%d:%d], %s offen offset:%d%s"%(rng(area+4*i,4),voff,srd,srd+3,so,io,flag),tag)
def kv_loads(area,srd,quarter,tag):
    tile_loads(area,2,srd,[("s%d"%(60+(quarter*8+i)//4),((quarter*8+i)%4)*1024) for i in range(8)],tag,KVFLAG)
def w_loads(area,voff,srd,sbase,tag):
    tile_loads(area,voff,srd,[("s%d"%(sbase+i),0) for i in range(8)],tag)
PT=[12,16,20]
def tile_mfma(area,aop,D,first):
    def perms(c,t):
        q=c>>1; sel="s44" if c&1 else "s43"
        for r in range(4):
            e("v_perm_b32 v%d, v%d, v%d, %s"%(t+r,area+4*(2*r+1)+q,area+4*(2*r)+q,sel))
    perms(0,PT[0])
    for c in range(8):
        if c+1<8: perms(c+1,PT[(c+1)%3])
        else: nop(1)
        cc="0" if first else rng(D+4*c,4)
        e("v_mfma_f32_16x16x32_bf16 %s, %s, %s, %s"%(rng(D+4*c,4),rng(aop,4),rng(PT[c%3],4),cc))
def preperm(src,dst):
    for c in range(8):
        q=c>>1; sel="s44" if c&1 else "s43"
        for r in range(4):
            e("v_perm_b32 v%d, v%d, v%d, %s"%(dst+4*c+r,src+4*(2*r+1)+q,src+4*(2*r)+q,sel))
def mfma_only(B,aop,D):
    for c in range(8):
        e("v_mfma_f32_16x16x32_bf16 %s, %s, %s, 0"%(rng(D+4*c,4),rng(aop,4),rng(B+4*c,4)))
def d_write(D,vaddr,reg=0,short=False):
    if not short: nop(7); nop(1)
    e("s_mov_b64 exec, 0xffff")
    for c in range(0,8,2):
        e("ds_write2_b32 v%d, v%d, v%d offset0:%d offset1:%d"%(vaddr,D+4*c+reg,D+4*(c+1)+reg,c,c+1))
    e("s_mov_b64 exec, -1")
def layernorm(vals,half,t,norm=None):
    n=len(vals); s=t;
    e("v_add_f32 v%d, v%d, v%d"%(s,vals[0],vals[1]))
    for v in vals[2:]: e("v_add_f32 v%d, v%d, v%d"%(s,s,v))
    wavered("v_add_f32",s,half)
    def bc(dst,src):
        if half:
            e("v_readlane_b32 s45, v%d, 31"%src); e("v_readlane_b32 s46, v%d, 63"%src); nop(1)
            e("v_mov_b32 v%d, s45"%dst); e("v_mov_b32 v%d, s46"%(dst+1)); nop(0)
            e("v_cndmask_b32 v%d, v%d, v%d, s[56:57]"%(dst,dst,dst+1))
        else:
            e("v_readlane_b32 s45, v%d, 63"%src); nop(1); e("v_mov_b32 v%d, s45"%dst)
    bc(t+1,s)
    e("v_mul_f32 v%d, 0x3acccccd, v%d"%(t+1,t+1))
    e("v_sub_f32 v%d, v%d, v%d"%(t+2,vals[0],t+1)); e("v_mul_f32 v%d, v%d, v%d"%(s,t+2,t+2))
    for v in vals[1:]:
        e("v_sub_f32 v%d, v%d, v%d"%(t+2,v,t+1)); e("v_fmac_f32 v%d, v%d, v%d"%(s,t+2,t+2))
    wavered("v_add_f32",s,half)
    bc(t+2,s)
    e("v_mul_f32 v%d, 0x3acccccd, v%d"%(t+2,t+2))
    bf16r(t+2,t+2); e("v_add_f32 v%d, 0x3727c5ac, v%d"%(t+2,t+2)); bf16r(t+2,t+2)
    e("v_sqrt_f32 v%d, v%d"%(t+2,t+2)); nop(0); bf16r(t+2,t+2)
    e("v_rcp_f32 v%d, v%d"%(t+3,t+2))
    bf16r(t+1,t+1)
    for v in (norm or vals):
        e("v_sub_f32 v%d, v%d, v%d"%(v,v,t+1)); bf16r(v,v)
        e("v_mul_f32 v%d, v%d, v%d"%(t+4,v,t+3))
        e("v_fma_f32 v%d, -v%d, v%d, v%d"%(t+5,t+4,t+2,v))
        e("v_fma_f32 v%d, v%d, v%d, v%d"%(v,t+5,t+3,t+4))
def prologue():
    e("s_cmp_ge_u32 s2, 256"); e("s_cbranch_scc1 L_end2")
    e("s_load_dwordx2 s[32:33], s[0:1], 0")
    e("s_load_dwordx2 s[4:5], s[0:1], 8"); e("s_load_dwordx2 s[8:9], s[0:1], 16")
    e("s_load_dwordx2 s[12:13], s[0:1], 24"); e("s_load_dwordx2 s[16:17], s[0:1], 32")
    e("s_load_dwordx2 s[20:21], s[0:1], 48"); e("s_load_dwordx2 s[24:25], s[0:1], 56")
    e("s_load_dwordx2 s[34:35], s[0:1], 64"); e("s_load_dwordx2 s[36:37], s[0:1], 72")
    e("s_load_dwordx2 s[28:29], s[0:1], 80")
    e("s_and_b32 s39, s2, 7"); e("s_lshl_b32 s39, s39, 2"); e("s_lshr_b32 s3, s2, 3"); e("s_and_b32 s3, s3, 3")
    e("s_or_b32 s39, s39, s3")
    e("s_lshr_b32 s3, s2, 5"); e("s_lshr_b32 s38, s3, 2"); e("s_and_b32 s40, s3, 3")
    e("s_lshl_b32 s42, s39, 2"); e("s_or_b32 s42, s42, s40")
    e("v_lshrrev_b32 v1, 6, v0"); nop(0); e("v_readfirstlane_b32 s41, v1")
    e("v_and_b32 v1, 63, v0"); e("v_lshrrev_b32 v3, 4, v1"); e("v_and_b32 v4, 15, v1")
    e("s_mov_b32 s43, 0x05040100"); e("s_mov_b32 s44, 0x07060302")
    for m in range(8):
        if os.environ.get("ROT"):
            if m==0:
                e("s_lshr_b32 s3, s2, 3"); e("s_add_u32 s3, s3, s41"); e("s_lshl_b32 s3, s3, 1")
            e("s_add_u32 s45, s3, %d"%m); e("s_and_b32 s45, s45, 7"); e("s_lshl_b32 s%d, s45, 12"%(60+m))
        elif os.environ.get("SWEEP"): e("s_mov_b32 s%d, %d"%(60+m,65536*(m>>1)+4096*(m&1)))
        else: e("s_mov_b32 s%d, %d"%(60+m,4096*m))
        e("s_mov_b32 s%d, %d"%(70+m,8192*m))
        e("s_mov_b32 s%d, %d"%(78+m,1280*m)); e("s_mov_b32 s%d, %d"%(86+m,3456*m))
    e("s_mov_b32 s54, 0xcccccccc"); e("s_mov_b32 s55, 0xcccccccc")
    e("s_mov_b32 s56, 0"); e("s_mov_b32 s57, -1")
    e("v_lshlrev_b32 v2, 4, v1"); e("s_lshl_b32 s3, s41, %d"%(13 if os.environ.get("SWEEP") else 15)); e("v_add_u32 v2, s3, v2")
    e("s_waitcnt lgkmcnt(0)")
    e("s_lshl_b32 s3, s38, 5"); e("s_add_u32 s3, s3, s39"); e("s_lshl_b32 s3, s3, 20")
    e("s_lshl_b32 s45, s40, 18"); e("s_add_u32 s3, s3, s45")
    for r in (4,8):
        e("s_add_u32 s%d, s%d, s3"%(r,r)); e("s_addc_u32 s%d, s%d, 0"%(r+1,r+1))
        e("s_mov_b32 s%d, 262144"%(r+2)); e("s_mov_b32 s%d, 0x20000"%(r+3))
    e("s_lshl_b32 s3, s39, 8"); e("s_add_u32 s12, s12, s3"); e("s_addc_u32 s13, s13, 0")
    e("s_sub_u32 s14, %d, s3"%(640*8192)); e("s_mov_b32 s15, 0x20000")
    e("s_mul_i32 s3, s39, %d"%(128*1280)); e("s_add_u32 s16, s16, s3"); e("s_addc_u32 s17, s17, 0")
    e("s_mov_b32 s18, %d"%(128*1280)); e("s_mov_b32 s19, 0x20000")
    e("s_mov_b32 s22, 2211840"); e("s_mov_b32 s23, 0x20000")
    e("s_mov_b32 s26, 2211840"); e("s_mov_b32 s27, 0x20000")
    e("s_mov_b32 s30, 0x100000"); e("s_mov_b32 s31, 0x20000")
    e("s_mul_i32 s3, s38, 1280"); e("s_add_u32 s32, s32, s3"); e("s_addc_u32 s33, s33, 0")
def sel_oob(v,cond_vcc=True):
    e("v_mov_b32 v11, 0x80000000"); nop(0); e("v_cndmask_b32 v%d, v11, v%d, vcc"%(v,v))
def y_addr(d,t):
    e("v_lshrrev_b32 v%d, 2, v0"%d); e("s_mul_i32 s3, s38, 40"); e("v_add_u32 v%d, s3, v%d"%(d,d))
    e("v_lshlrev_b32 v%d, 13, v%d"%(d,d)); e("s_lshl_b32 s3, s42, 6"); e("v_add_u32 v%d, s3, v%d"%(d,d))
    e("v_and_b32 v%d, 3, v0"%t); e("v_lshlrev_b32 v%d, 4, v%d"%(t,t)); e("v_add_u32 v%d, v%d, v%d"%(d,d,t))
def zero_phase():
    for r in range(12,16): e("v_mov_b32 v%d, 0"%r)
    y_addr(9,10)
    e("v_cmp_gt_u32 vcc, 160, v0"); sel_oob(9)
    e("v_subrev_u32 v10, 160, v0"); e("v_lshlrev_b32 v16, 4, v10"); e("s_lshl_b32 s3, s2, 6"); e("s_add_u32 s3, s3, %d"%W_H)
    e("v_add_u32 v16, s3, v16"); e("s_cmp_lt_u32 s2, 80"); e("s_cselect_b32 s45, 4, 0")
    e("v_cmp_gt_u32 vcc, s45, v10"); nop(1); e("v_cndmask_b32 v9, v9, v16, vcc")
    g.vmem("buffer_store_dwordx4 v[12:15], v9, s[28:31], 0 offen sc1","z")
    e("s_sub_u32 s45, s2, 80"); e("v_lshrrev_b32 v9, 3, v0"); e("v_mul_u32_u24 v9, 54, v9"); e("v_add_u32 v9, s45, v9")
    e("v_lshlrev_b32 v9, 7, v9"); e("v_and_b32 v10, 7, v0"); e("v_lshlrev_b32 v10, 4, v10"); e("v_add_u32 v9, v9, v10")
    e("v_add_u32 v9, %d, v9"%W_Z); e("s_cmp_lt_u32 s45, 54"); e("s_cselect_b32 s45, 320, 0")
    e("v_cmp_gt_u32 vcc, s45, v0"); sel_oob(9)
    g.vmem("buffer_store_dwordx4 v[12:15], v9, s[28:31], 0 offen sc1","z")
    e("s_lshl_b32 s3, s38, 7"); e("s_add_u32 s3, s3, s42"); e("s_lshl_b32 s3, s3, 3"); e("s_add_u32 s47, s3, %d"%W_ML)
    e("v_mov_b32 v9, s47"); e("v_cmp_eq_u32 vcc, 0, v0"); sel_oob(9)
    g.vmem("buffer_store_dwordx2 v[12:13], v9, s[28:31], 0 offen sc1","z")
def wq_issue(i,area):
    e("s_add_u32 s3, s41, %d"%(8*i)); e("s_lshl_b32 s45, s3, 18")
    e("s_cmp_lt_u32 s3, 20"); e("s_cselect_b32 s45, s45, 0x80000000")
    e("v_lshlrev_b32 v9, 16, v3"); e("v_lshl_add_u32 v9, v4, 4, v9"); e("v_or_b32 v9, s45, v9")
    w_loads(area,9,12,70,"wq%d"%i)
def wo_issue(i,area):
    e("s_and_b32 s3, s41, 3"); e("s_mul_i32 s45, s3, %d"%(32*1280)); e("s_lshr_b32 s3, s41, 2"); e("s_mul_i32 s3, s3, 3")
    e("s_add_u32 s3, s3, %d"%i); e("s_lshl_b32 s46, s3, 8"); e("s_add_u32 s45, s45, s46")
    e("s_cmp_lt_u32 s3, 5"); e("s_cselect_b32 s45, s45, 0x80000000")
    e("v_mul_u32_u24 v9, %d, v3"%(8*1280)); e("v_lshl_add_u32 v9, v4, 4, v9"); e("v_add_u32 v9, s45, v9")
    w_loads(area,9,16,78,"wo%d"%i)
def ffn_issue(which,area):
    e("s_sub_u32 s48, s2, 80"); e("s_cmp_lt_u32 s48, 54"); e("s_cselect_b32 s46, 5, 0"); e("s_cmp_lt_u32 s41, s46")
    e("s_cselect_b32 s46, 0, 0x80000000")
    if which==1:
        e("v_lshrrev_b32 v9, 2, v4"); e("v_lshlrev_b32 v9, 2, v9"); e("v_add_u32 v9, v9, v3"); e("v_mul_u32_u24 v9, %d, v9"%(8*3456))
        e("v_and_b32 v10, 3, v4"); e("v_lshl_add_u32 v9, v10, 4, v9")
        e("s_mul_i32 s45, s41, %d"%(128*3456)); e("s_lshl_b32 s3, s48, 6"); e("s_add_u32 s45, s45, s3")
    else:
        e("v_mul_u32_u24 v9, %d, v3"%(8*1280)); e("v_lshl_add_u32 v9, v4, 4, v9")
        e("s_mul_i32 s45, s48, %d"%(32*1280)); e("s_lshl_b32 s3, s41, 8"); e("s_add_u32 s45, s45, s3")
    e("s_cmp_eq_u32 s46, 0"); e("s_cselect_b32 s45, s45, s46")
    e("v_add_u32 v9, s45, v9")
    w_loads(area,9,20 if which==1 else 24,86 if which==1 else 78,"w%d"%which)
def qk(area,dst):
    d=12
    for q in range(4):
        for i in range(8):
            c="0" if q==0 else "v%d"%(d+i)
            e("v_dot2_f32_bf16 v%d, v%d, v%d, %s"%(d+i,area+4*i+q,28+q,c))
    nop(3)
    for i in range(4):
        e("v_add_f32_dpp v%d, v%d, v%d row_ror:8 row_mask:0xf bank_mask:0x3"%(d+i,d+i,d+i))
        e("v_add_f32_dpp v%d, v%d, v%d row_ror:8 row_mask:0xf bank_mask:0xc"%(d+i,d+i+4,d+i+4))
    nop(1)
    for i in range(2):
        e("v_add_f32_dpp v%d, v%d, v%d row_shl:4 row_mask:0xf bank_mask:0x5"%(d+i,d+i,d+i))
        e("v_add_f32_dpp v%d, v%d, v%d row_shr:4 row_mask:0xf bank_mask:0xa"%(d+i,d+i+2,d+i+2))
    nop(1)
    for i in range(2):
        e("v_add_f32_dpp v%d, v%d, v%d quad_perm:[2,3,0,1] row_mask:0xf bank_mask:0xf"%(d+4+i,d+i,d+i))
    nop(0)
    e("v_cndmask_b32 v%d, v%d, v%d, s[54:55]"%(d,d+4,d+5)); nop(1)
    e("v_add_f32_dpp v%d, v%d, v%d quad_perm:[1,0,3,2] row_mask:0xf bank_mask:0xf"%(d,d,d))
    bf16r(d,d); e("v_mul_f32 v%d, 0x3db504f3, v%d"%(d,d)); bf16r(d,d)
    e("v_mul_f32 v%d, 0x3fb8aa3b, v%d"%(dst,d))
```

```python
from g1 import *
import g1
def main():
    prologue(); stamp(0)
    for k in range(1,7):
        if DBG: e("s_mov_b32 s%d, s96"%SREG[k])
    zero_phase()
    e("v_lshlrev_b32 v9, 2, v1")
    for i in range(5): g.vmem("global_load_dword v%d, v9, s[32:33] offset:%d"%(24+i,256*i),"x")
    wq_issue(0,B0); wq_issue(1,B1); wq_issue(2,B2)
    NOK=os.environ.get("NOK")
    if not NOK: kv_loads(A0,4,0,"K0"); kv_loads(A1,4,1,"K1"); kv_loads(A2,4,2,"K2")
    g.wait("x")
    vals=list(range(DD,DD+10))
    for i in range(5):
        e("v_lshlrev_b32 v%d, 16, v%d"%(DD+2*i,24+i)); e("v_and_b32 v%d, 0xffff0000, v%d"%(DD+2*i+1,24+i))
    layernorm(vals,False,12)
    e("v_lshlrev_b32 v9, 2, v1")
    for i in range(5):
        e("v_cvt_pk_bf16_f32 v%d, v%d, v%d"%(24+i,DD+2*i,DD+2*i+1))
        e("ds_write_b32 v9, v%d offset:%d"%(24+i,L_LN+256*i))
    e("s_waitcnt lgkmcnt(0)")
    for i,ar in enumerate((B0,B1,B2)):
        e("s_add_u32 s3, s41, %d"%(8*i)); e("s_cmp_lt_u32 s3, 20"); e("s_cselect_b32 s3, s3, 0"); e("s_lshl_b32 s3, s3, 6")
        e("v_lshlrev_b32 v9, 4, v3"); e("v_add_u32 v9, s3, v9"); e("ds_read_b128 v[24:27], v9 offset:%d"%L_LN)
        g.wait("wq%d"%i); e("s_waitcnt lgkmcnt(0)")
        tile_mfma(ar,24,DD,i==0)
    stamp(6)
    if NOK: kv_loads(A0,4,0,"K0"); kv_loads(A1,4,1,"K1"); kv_loads(A2,4,2,"K2")
    e("s_lshl_b32 s3, s41, 9"); e("v_lshlrev_b32 v10, 5, v4"); e("v_add_u32 v10, s3, v10"); e("v_add_u32 v10, %d, v10"%L_QP)
    d_write(DD,10)
    e("s_waitcnt lgkmcnt(0)")
    kv_loads(DD,4,3,"K3"); kv_loads(B0,8,0,"V0"); kv_loads(B1,8,1,"V1"); kv_loads(B2,8,2,"V2")
    e("s_barrier")
    e("s_cmp_lg_u32 s41, 0"); e("s_cbranch_scc1 L_nocnt")
    e("v_mov_b32 v9, 0"); e("v_mov_b32 v10, 1"); e("s_mov_b64 exec, 1")
    e("global_atomic_add v9, v10, s[36:37] sc1"); e("s_mov_b64 exec, -1")
    g.lbl("L_nocnt")
    e("s_cmp_ge_u32 s41, 2"); e("s_cbranch_scc1 L_noq")
    e("v_lshlrev_b32 v9, 2, v0")
    for i in range(8): e("ds_read_b32 v%d, v9 offset:%d"%(12+i,L_QP+512*i))
    e("s_waitcnt lgkmcnt(0)")
    for i in range(1,8): e("v_add_f32 v12, v12, v%d"%(12+i))
    e("v_cvt_pk_bf16_f32 v12, v12, v12"); e("v_lshlrev_b32 v9, 1, v0"); e("ds_write_b16 v9, v12 offset:%d"%L_Q)
    e("s_waitcnt lgkmcnt(0)")
    g.lbl("L_noq")
    e("s_barrier")
    e("v_lshlrev_b32 v9, 4, v4"); e("ds_read_b128 v[28:31], v9 offset:%d"%L_Q); e("s_waitcnt lgkmcnt(0)")
    stamp(1)
    g.wait("K0"); qk(A0,5); wo_issue(0,A0)
    g.wait("K1"); qk(A1,6); wo_issue(1,A1)
    g.wait("K2"); qk(A2,7); kv_loads(A2,8,3,"V3")
    g.wait("K3"); qk(DD,8)
    stamp(2)
    e("v_max_f32 v9, v5, v6"); e("v_max3_f32 v9, v9, v7, v8")
    wavered("v_max_f32",9); e("v_readlane_b32 s50, v9, 63"); nop(1)
    for i in range(4): e("v_subrev_f32 v%d, s50, v%d"%(5+i,5+i))
    for i in range(4): e("v_exp_f32 v%d, v%d"%(5+i,5+i))
    nop(0)
    e("v_add_f32 v9, v5, v6"); e("v_add_f32 v10, v7, v8"); e("v_add_f32 v9, v9, v10")
    e("v_lshrrev_b32 v10, 1, v4"); e("v_lshlrev_b32 v10, 1, v10"); e("v_lshl_add_u32 v10, v3, 4, v10")
    e("s_lshl_b32 s3, s41, 8"); e("v_add_u32 v10, s3, v10")
    for i in range(4):
        e("v_cvt_pk_bf16_f32 v%d, v%d, v%d"%(5+i,5+i,5+i)); e("ds_write_b16 v10, v%d offset:%d"%(5+i,L_P+64*i))
    wavered("v_add_f32",9); e("v_readlane_b32 s51, v9, 63"); nop(1)
    e("v_mov_b32 v12, s50"); e("v_mov_b32 v13, s51"); e("v_mul_f32 v13, 0.5, v13")
    e("s_lshl_b32 s3, s41, 3"); e("v_mov_b32 v9, s3"); e("s_mov_b64 exec, 1")
    e("ds_write_b64 v9, v[12:13] offset:%d"%L_ML); e("s_mov_b64 exec, -1")
    e("v_lshlrev_b32 v31, 4, v3"); e("s_lshl_b32 s3, s41, 8"); e("v_add_u32 v31, s3, v31")
    e("s_waitcnt lgkmcnt(0)")
    ACC=DD
    def pv(i,ar,tag):
        e("ds_read_b128 v[24:27], v31 offset:%d"%(L_P+64*i)); g.wait(tag); e("s_waitcnt lgkmcnt(0)")
        tile_mfma(ar,24,ACC,i==0)
    pv(0,B0,"V0"); wo_issue(2,B0)
    e("v_mov_b32 v9, 0"); g.vmem("global_load_dword v30, v9, s[36:37] sc1","cnt")
    pv(1,B1,"V1"); pv(2,B2,"V2")
    g.wait("wo1"); preperm(A0,B1); preperm(A1,B2)
    ffn_issue(1,A0); ffn_issue(2,A1)
    pv(3,A2,"V3")
    stamp(3)
    e("s_lshl_b32 s3, s41, 9"); e("v_lshlrev_b32 v10, 5, v4"); e("v_add_u32 v10, s3, v10"); e("v_add_u32 v10, %d, v10"%L_QP)
    d_write(ACC,10)
    g.wait("wo2"); preperm(B0,A2)
    e("s_waitcnt lgkmcnt(0)"); e("s_barrier")
    T=B0
    e("v_mov_b32 v9, 0")
    for i in range(4): e("ds_read_b128 %s, v9 offset:%d"%(rng(T+4*i,4),L_ML+16*i))
    e("s_and_b32 s3, s41, 3"); e("s_lshl_b32 s3, s3, 5"); e("v_and_b32 v20, 31, v1"); e("v_add_u32 v20, s3, v20")
    e("v_lshlrev_b32 v9, 2, v20")
    for i in range(8): e("ds_read_b32 v%d, v9 offset:%d"%(12+i,L_QP+512*i))
    e("s_waitcnt lgkmcnt(8)")
    e("v_max3_f32 v10, v%d, v%d, v%d"%(T,T+2,T+4)); e("v_max3_f32 v11, v%d, v%d, v%d"%(T+6,T+8,T+10))
    e("v_max3_f32 v10, v10, v%d, v%d"%(T+12,T+14)); e("v_max_f32 v10, v10, v11")
    for i in range(8): e("v_sub_f32 v%d, v%d, v10"%(T+2*i,T+2*i))
    for i in range(8): e("v_exp_f32 v%d, v%d"%(T+2*i,T+2*i))
    nop(0)
    e("v_mul_f32 v11, v%d, v%d"%(T,T+1)); e("v_mul_f32 v21, v%d, v%d"%(T+2,T+3))
    for i in range(2,8): e("v_fmac_f32 v%d, v%d, v%d"%(11 if i%2==0 else 21,T+2*i,T+2*i+1))
    e("v_add_f32 v11, v11, v21")
    e("s_waitcnt lgkmcnt(0)")
    e("v_mul_f32 v12, v12, v%d"%T); e("v_mul_f32 v13, v13, v%d"%(T+2))
    e("v_rcp_f32 v22, v11")
    for i in range(2,8): e("v_fmac_f32 v%d, v%d, v%d"%(12+(i&1),12+i,T+2*i))
    e("v_add_f32 v12, v12, v13"); e("v_mul_f32 v12, v12, v22")
    e("v_cvt_pk_bf16_f32 v12, v12, v12"); e("v_lshlrev_b32 v9, 1, v20"); e("ds_write_b16 v9, v12 offset:%d"%L_Q)
    e("s_cmp_lg_u32 s41, 0"); e("s_cbranch_scc1 L_noo")
    e("v_or_b32 v14, 1, v10"); e("v_or_b32 v15, 1, v11"); e("v_mov_b32 v9, s47"); e("v_cmp_eq_u32 vcc, 0, v0"); sel_oob(9)
    e("buffer_store_dwordx2 v[14:15], v9, s[28:31], 0 offen sc1")
    g.lbl("L_noo")
    e("s_and_b32 s3, s41, 3"); e("s_lshl_b32 s3, s3, 6"); e("v_lshlrev_b32 v9, 4, v3"); e("v_add_u32 v9, s3, v9")
    e("s_waitcnt lgkmcnt(0)")
    e("ds_read_b128 v[24:27], v9 offset:%d"%L_Q)
    e("s_and_b32 s3, s41, 3"); e("s_mul_i32 s3, s3, 3072"); e("s_lshr_b32 s45, s41, 2"); e("s_mul_i32 s45, s45, 1536")
    e("s_add_u32 s3, s3, s45"); e("s_add_u32 s3, s3, %d"%L_YP); e("v_lshlrev_b32 v10, 5, v4"); e("v_add_u32 v10, s3, v10")
    e("v_add_u32 v22, 512, v10"); e("v_add_u32 v23, 1024, v10")
    e("s_waitcnt lgkmcnt(0)")
    mfma_only(B1,24,DD); mfma_only(B2,24,B0)
    d_write(DD,10,short=True); mfma_only(A2,24,B1); d_write(B0,22,short=True); d_write(B1,23)
    e("s_waitcnt lgkmcnt(0)"); e("s_barrier")
    y_addr(9,10); e("v_cmp_gt_u32 vcc, 160, v0"); sel_oob(9)
    e("s_cmp_ge_u32 s41, 3"); e("s_cbranch_scc1 L_noy")
    e("v_lshlrev_b32 v10, 4, v0")
    for i in range(4): e("ds_read_b128 %s, v10 offset:%d"%(rng(DD+4*i,4),L_YP+3072*i))
    e("s_waitcnt lgkmcnt(0)")
    for x in range(4):
        e("v_add_f32 v%d, v%d, v%d"%(DD+x,DD+x,DD+4+x)); e("v_add_f32 v%d, v%d, v%d"%(DD+8+x,DD+8+x,DD+12+x))
        e("v_add_f32 v%d, v%d, v%d"%(DD+x,DD+x,DD+8+x)); e("v_or_b32 v%d, 1, v%d"%(DD+x,DD+x))
    e("buffer_store_dwordx4 %s, v9, s[28:31], 0 offen sc1"%rng(DD,4))
    g.lbl("L_noy")
    stamp(4)
    e("s_cmp_ge_u32 s2, 174"); e("s_cbranch_scc1 L_end")
    g.wait("cnt"); e("s_mov_b32 s52, 0")
    g.lbl("L_cchk")
    e("v_readfirstlane_b32 s3, v30"); e("s_cmp_eq_u32 s3, 256"); e("s_cbranch_scc1 L_cok")
    e("s_add_u32 s52, s52, 1"); e("s_cmp_gt_u32 s52, %d"%POLLMAX); e("s_cbranch_scc1 L_cok")
    e("v_mov_b32 v9, 0"); e("global_load_dword v30, v9, s[36:37] sc1"); e("s_waitcnt vmcnt(0)"); e("s_branch L_cchk")
    g.lbl("L_cok")
    e("s_cmp_ge_u32 s2, 134"); e("s_cbranch_scc1 L_hopC")
    e("s_cmp_ge_u32 s2, 80"); e("s_cbranch_scc1 L_ffn")
    hopA(); ffn(); hopC()
    g.lbl("L_end"); stamp_out(); g.lbl("L_end2"); e("s_endpgm")
POLLMAX=20000
def poll(loads,words,extra=None):
    lp=g.newlbl("poll"); dn=g.newlbl("done")
    e("s_mov_b32 s52, 0"); g.lbl(lp)
    for l in loads: e(l)
    e("s_waitcnt vmcnt(0)")
    e("v_and_b32 v11, v%d, v%d"%(words[0],words[1]))
    for w in words[2:]: e("v_and_b32 v11, v11, v%d"%w)
    if extra is not None: e("v_or_b32 v11, v11, v%d"%extra)
    e("v_and_b32 v11, 1, v11"); e("v_cmp_ne_u32 vcc, 1, v11"); e("s_add_u32 s52, s52, 1")
    e("s_cmp_gt_u32 s52, %d"%POLLMAX); e("s_cbranch_scc1 %s"%dn)
    nop(1); e("s_cmp_eq_u64 vcc, 0"); e("s_cbranch_scc0 %s"%lp)
    g.lbl(dn)
    stamp(5)
def hopA():
    e("s_cmp_ge_u32 s2, 40"); e("s_cselect_b32 s48, 1, 0")
    e("s_lshl_b32 s3, s2, 13"); e("v_lshlrev_b32 v9, 4, v0"); e("v_add_u32 v9, s3, v9")
    e("s_lshl_b32 s3, s48, 10"); e("s_add_u32 s3, s3, %d"%W_ML)
    e("v_lshrrev_b32 v10, 4, v0"); e("v_lshlrev_b32 v10, 5, v10"); e("v_add_u32 v10, s3, v10")
    e("v_lshrrev_b32 v28, 2, v0"); e("v_lshlrev_b32 v28, 3, v28"); e("v_add_u32 v28, s3, v28")
    e("s_lshl_b32 s3, s48, 0"); e("s_sub_u32 s3, s3, s38"); e("s_mul_i32 s3, s3, 1280")
    e("s_mul_i32 s45, s48, 40"); e("s_sub_u32 s45, s2, s45"); e("s_lshl_b32 s45, s45, 5"); e("s_add_u32 s3, s3, s45")
    e("s_ashr_i32 s45, s3, 31"); e("s_add_u32 s58, s32, s3"); e("s_addc_u32 s59, s33, s45")
    e("v_lshlrev_b32 v29, 1, v4"); e("global_load_ushort v27, v29, s[58:59]")
    poll(["buffer_load_dwordx4 v[12:15], v9, s[28:31], 0 offen sc1","buffer_load_dwordx4 v[16:19], v10, s[28:31], 0 offen sc1",
          "buffer_load_dwordx4 v[20:23], v10, s[28:31], 0 offen offset:16 sc1","buffer_load_dwordx2 v[24:25], v28, s[28:31], 0 offen sc1"],
         list(range(12,26)))
    e("v_max3_f32 v10, v16, v18, v20"); e("v_max_f32 v10, v10, v22")
    for r in (16,18,20,22,24): e("v_sub_f32 v%d, v%d, v10"%(r,r))
    for r in (16,18,20,22,24): e("v_exp_f32 v%d, v%d"%(r,r))
    nop(0)
    e("v_mul_f32 v11, v16, v17"); e("v_fmac_f32 v11, v18, v19"); e("v_fmac_f32 v11, v20, v21"); e("v_fmac_f32 v11, v22, v23")
    e("v_rcp_f32 v11, v11"); e("v_mul_f32 v24, v24, v25"); nop(0); e("v_mul_f32 v24, v24, v11")
    for x in range(4): e("v_mul_f32 v%d, v%d, v24"%(12+x,12+x))
    for r in (4,8):
        nop(1)
        for x in range(4): e("v_add_f32_dpp v%d, v%d, v%d row_ror:%d row_mask:0xf bank_mask:0xf"%(12+x,12+x,12+x,r))
    e("v_lshrrev_b32 v9, 4, v0"); e("v_lshlrev_b32 v9, 6, v9"); e("v_lshl_add_u32 v9, v4, 4, v9")
    e("v_cmp_gt_u32 vcc, 4, v4"); e("s_and_saveexec_b64 s[94:95], vcc")
    e("ds_write_b128 v9, v[12:15] offset:%d"%L_T); e("s_mov_b64 exec, -1")
    e("s_waitcnt lgkmcnt(0)"); e("s_barrier")
    e("s_cmp_lg_u32 s41, 0"); e("s_cbranch_scc1 L_end")
    e("v_lshlrev_b32 v9, 9, v3"); e("v_lshl_add_u32 v9, v4, 2, v9")
    for i in range(8): e("ds_read_b32 v%d, v9 offset:%d"%(12+i,L_T+64*i))
    e("s_waitcnt lgkmcnt(0)")
    for i in range(1,8): e("v_add_f32 v12, v12, v%d"%(12+i))
    xrow(12,13)
    bf16r(12,12); e("v_lshlrev_b32 v27, 16, v27"); e("v_add_f32 v12, v12, v27"); bf16r(12,12); e("v_or_b32 v12, 1, v12")
    e("s_lshl_b32 s3, s2, 6"); e("s_add_u32 s3, s3, %d"%W_H); e("v_lshlrev_b32 v9, 2, v4"); e("v_add_u32 v9, s3, v9")
    e("v_cmp_gt_u32 vcc, 16, v1"); sel_oob(9)
    e("buffer_store_dword v12, v9, s[28:31], 0 offen sc1")
    e("s_branch L_end")
def xrow(v,t,only32=False):
    if not only32:
        e("v_mov_b32 v%d, v%d"%(t,v)); nop(1); e("v_permlane16_swap_b32 v%d, v%d"%(v,t)); nop(1); e("v_add_f32 v%d, v%d, v%d"%(v,v,t))
    e("v_mov_b32 v%d, v%d"%(t,v)); nop(1); e("v_permlane32_swap_b32 v%d, v%d"%(v,t)); nop(1); e("v_add_f32 v%d, v%d, v%d"%(v,v,t))
def ffn():
    g.lbl("L_ffn")
    e("s_cmp_ge_u32 s41, 5"); e("s_cbranch_scc1 L_ffn_idle")
    e("s_sub_u32 s48, s2, 80")
    e("v_lshrrev_b32 v9, 5, v1"); e("v_mul_u32_u24 v9, 2560, v9"); e("v_and_b32 v10, 31, v1"); e("v_lshl_add_u32 v9, v10, 4, v9")
    e("v_add_u32 v9, %d, v9"%W_H)
    vals=list(range(DD,DD+20))
    poll(["buffer_load_dwordx4 %s, v9, s[28:31], 0 offen offset:%d sc1"%(rng(DD+4*i,4),512*i) for i in range(5)],vals)
    for v in vals: e("v_and_b32 v%d, 0xffff0000, v%d"%(v,v))
    layernorm(vals,True,12)
    e("v_lshrrev_b32 v9, 5, v1"); e("v_mul_u32_u24 v9, 1280, v9"); e("v_and_b32 v10, 31, v1"); e("v_lshl_add_u32 v9, v10, 3, v9")
    for i in range(5):
        e("v_cvt_pk_bf16_f32 v12, v%d, v%d"%(DD+4*i,DD+4*i+1)); e("v_cvt_pk_bf16_f32 v13, v%d, v%d"%(DD+4*i+2,DD+4*i+3))
        e("ds_write_b64 v9, v[12:13] offset:%d"%(L_LN+256*i)); nop(0)
    e("s_waitcnt lgkmcnt(0)")
    e("v_and_b32 v9, 1, v4"); e("v_mul_u32_u24 v9, 1280, v9"); e("v_lshrrev_b32 v10, 2, v4"); e("v_lshl_add_u32 v9, v10, 6, v9")
    e("v_lshl_add_u32 v9, v3, 4, v9"); e("s_lshl_b32 s3, s41, 8"); e("v_add_u32 v9, s3, v9")
    e("ds_read_b128 v[24:27], v9 offset:%d"%L_LN); e("s_waitcnt lgkmcnt(0)")
    tile_mfma(A0,24,DD,True)
    e("v_lshrrev_b32 v10, 2, v4"); e("v_cmp_eq_u32 vcc, v10, v3")
    e("v_lshlrev_b32 v9, 8, v10"); e("v_and_b32 v10, 3, v4"); e("v_lshl_add_u32 v9, v10, 5, v9")
    e("s_lshl_b32 s3, s41, 10"); e("v_add_u32 v9, s3, v9"); e("v_add_u32 v9, %d, v9"%L_T)
    nop(7); e("s_and_saveexec_b64 s[94:95], vcc")
    for b in range(2):
        for c in range(0,8,2):
            e("ds_write2_b32 v9, v%d, v%d offset0:%d offset1:%d"%(DD+4*c+b,DD+4*(c+1)+b,32*b+c,32*b+c+1))
    e("s_mov_b64 exec, -1"); e("s_waitcnt lgkmcnt(0)")
    g.lbl("L_ffn_idle")
    e("s_barrier")
    e("s_cmp_ge_u32 s41, 5"); e("s_cbranch_scc1 L_end")
    e("v_lshlrev_b32 v9, 2, v1")
    for i in range(20): e("ds_read_b32 v%d, v9 offset:%d"%(DD+i,L_T+256*i))
    e("s_waitcnt lgkmcnt(0)")
    for i in range(10): e("v_add_f32 v%d, v%d, v%d"%(DD+i,DD+i,DD+10+i))
    for i in range(5): e("v_add_f32 v%d, v%d, v%d"%(DD+i,DD+i,DD+5+i))
    for i in range(1,5): e("v_add_f32 v%d, v%d, v%d"%(DD,DD,DD+i))
    e("v_max_f32 v%d, 0, v%d"%(DD,DD)); e("v_cvt_pk_bf16_f32 v12, v%d, v%d"%(DD,DD))
    e("v_lshlrev_b32 v9, 1, v1"); e("ds_write_b16 v9, v12 offset:%d"%L_Q); e("s_waitcnt lgkmcnt(0)")
    e("v_and_b32 v9, 1, v4"); e("v_lshlrev_b32 v9, 6, v9"); e("v_lshl_add_u32 v9, v3, 4, v9")
    e("ds_read_b128 v[24:27], v9 offset:%d"%L_Q); e("s_waitcnt lgkmcnt(0)")
    tile_mfma(A1,24,DD,True)
    e("v_mul_u32_u24 v9, 20, v3"); e("v_lshrrev_b32 v10, 2, v4"); e("v_add_u32 v9, v9, v10"); e("s_lshl_b32 s3, s41, 2")
    e("v_add_u32 v9, s3, v9"); e("v_mul_u32_u24 v9, 54, v9"); e("v_add_u32 v9, s48, v9"); e("v_lshlrev_b32 v9, 7, v9")
    e("v_and_b32 v10, 3, v4"); e("v_lshl_add_u32 v9, v10, 5, v9"); e("v_add_u32 v9, %d, v9"%W_Z)
    e("v_cmp_gt_u32 vcc, 32, v1"); sel_oob(9)
    e("v_cmp_eq_u32 vcc, 1, v3"); nop(7)
    for c in range(8):
        e("v_cndmask_b32 v%d, v%d, v%d, vcc"%(12+c,DD+4*c,DD+4*c+1));
    for c in range(8): e("v_or_b32 v%d, 1, v%d"%(12+c,12+c))
    e("buffer_store_dwordx4 v[12:15], v9, s[28:31], 0 offen sc1")
    e("buffer_store_dwordx4 v[16:19], v9, s[28:31], 0 offen offset:16 sc1")
    e("s_branch L_end")
def hopC():
    g.lbl("L_hopC")
    e("s_sub_u32 s48, s2, 134")
    e("s_mul_i32 s3, s48, 6912"); e("s_add_u32 s3, s3, %d"%W_Z); e("v_lshlrev_b32 v9, 4, v0"); e("v_add_u32 v9, s3, v9")
    e("v_cmp_gt_u32 vcc, 432, v0"); sel_oob(9)
    e("v_cmp_le_u32 vcc, 432, v0"); nop(1); e("v_cndmask_b32 v28, 0, 1, vcc")
    e("s_lshl_b32 s3, s48, 7"); e("s_add_u32 s3, s3, %d"%W_H); e("v_and_b32 v10, 31, v1"); e("v_lshl_add_u32 v10, v10, 2, s3")
    e("v_mov_b32 v17, -1");
    poll(["buffer_load_dwordx4 v[12:15], v9, s[28:31], 0 offen sc1"],[12,13,14,15],28)
    e("buffer_load_dword v27, v10, s[28:31], 0 offen sc1")
    nop(1)
    for x in range(4): e("v_add_f32_dpp v%d, v%d, v%d row_ror:8 row_mask:0xf bank_mask:0xf"%(12+x,12+x,12+x))
    e("v_lshrrev_b32 v9, 4, v0"); e("v_lshlrev_b32 v9, 7, v9"); e("v_lshl_add_u32 v9, v4, 4, v9")
    e("v_cmp_gt_u32 vcc, 8, v4"); e("s_and_saveexec_b64 s[94:95], vcc")
    e("ds_write_b128 v9, v[12:15] offset:%d"%L_T); e("s_mov_b64 exec, -1")
    e("s_waitcnt lgkmcnt(0)"); e("s_barrier")
    e("s_cmp_lg_u32 s41, 0"); e("s_cbranch_scc1 L_end")
    e("v_lshrrev_b32 v9, 5, v1"); e("v_lshlrev_b32 v9, 11, v9"); e("v_and_b32 v11, 31, v1"); e("v_lshl_add_u32 v9, v11, 2, v9")
    for i in range(16): e("ds_read_b32 v%d, v9 offset:%d"%(DD+i,L_T+128*i))
    e("s_waitcnt lgkmcnt(0)")
    for i in range(8): e("v_add_f32 v%d, v%d, v%d"%(DD+i,DD+i,DD+8+i))
    for i in range(4): e("v_add_f32 v%d, v%d, v%d"%(DD+i,DD+i,DD+4+i))
    for i in range(1,4): e("v_add_f32 v%d, v%d, v%d"%(DD,DD,DD+i))
    xrow(DD,DD+1,True)
    e("s_waitcnt vmcnt(0)")
    bf16r(DD,DD); e("v_and_b32 v27, 0xffff0000, v27"); e("v_add_f32 v%d, v%d, v27"%(DD,DD))
    e("v_cvt_pk_bf16_f32 v12, v%d, v%d"%(DD,DD))
    e("s_lshl_b32 s3, s48, 6"); e("v_lshlrev_b32 v9, 1, v11"); e("v_add_u32 v9, s3, v9")
    e("s_mov_b64 exec, 0xffffffff"); e("global_store_short v9, v12, s[34:35]"); e("s_mov_b64 exec, -1")
HDR=open('cdna_kernels/%s.s.ref'%NAME).read().split("; @launch")[0]
def build(path):
    main()
    out=HDR+"; @launch grid=(256,1,1) block=(512,1,1) lds=%d\n"%L_SIZE
    out+='.amdgcn_target "amdgcn-amd-amdhsa--gfx950"\n.text\n.globl %s_kernel\n.p2align 8\n.type %s_kernel,@function\n%s_kernel:\n'%(NAME,NAME,NAME)
    out+="\n".join(g.L)+"\n"
    out+='.section .rodata,"a"\n.p2align 6\n.amdhsa_kernel %s_kernel\n  .amdhsa_next_free_vgpr 256\n  .amdhsa_next_free_sgpr 102\n  .amdhsa_accum_offset 256\n  .amdhsa_group_segment_fixed_size 0\n  .amdhsa_kernarg_size 88\n  .amdhsa_user_sgpr_count 2\n  .amdhsa_user_sgpr_kernarg_segment_ptr 1\n  .amdhsa_system_sgpr_workgroup_id_x 1\n.end_amdhsa_kernel\n'%NAME
    open(path,'w').write(out)
if __name__=="__main__":
    import sys
    build(sys.argv[1] if len(sys.argv)>1 else 'cdna_kernels/%s.s'%NAME)
```

```python
from g1 import *
import g1
def main():
    prologue(); stamp(0)
    for k in range(1,7):
        if DBG: e("s_mov_b32 s%d, s96"%SREG[k])
    zero_phase()
    e("v_lshlrev_b32 v9, 2, v1")
    for i in range(5): g.vmem("global_load_dword v%d, v9, s[32:33] offset:%d"%(24+i,256*i),"x")
    wq_issue(0,B0); wq_issue(1,B1); wq_issue(2,B2)
    NOK=os.environ.get("NOK")
    if not NOK: kv_loads(A0,4,0,"K0"); kv_loads(A1,4,1,"K1"); kv_loads(A2,4,2,"K2")
    g.wait("x")
    vals=list(range(DD,DD+10))
    for i in range(5):
        e("v_lshlrev_b32 v%d, 16, v%d"%(DD+2*i,24+i)); e("v_and_b32 v%d, 0xffff0000, v%d"%(DD+2*i+1,24+i))
    layernorm(vals,False,12)
    e("v_lshlrev_b32 v9, 2, v1")
    for i in range(5):
        e("v_cvt_pk_bf16_f32 v%d, v%d, v%d"%(24+i,DD+2*i,DD+2*i+1))
        e("ds_write_b32 v9, v%d offset:%d"%(24+i,L_LN+256*i))
    e("s_waitcnt lgkmcnt(0)")
    for i,ar in enumerate((B0,B1,B2)):
        e("s_add_u32 s3, s41, %d"%(8*i)); e("s_cmp_lt_u32 s3, 20"); e("s_cselect_b32 s3, s3, 0"); e("s_lshl_b32 s3, s3, 6")
        e("v_lshlrev_b32 v9, 4, v3"); e("v_add_u32 v9, s3, v9"); e("ds_read_b128 v[24:27], v9 offset:%d"%L_LN)
        g.wait("wq%d"%i); e("s_waitcnt lgkmcnt(0)")
        tile_mfma(ar,24,DD,i==0)
    stamp(6)
    if NOK: kv_loads(A0,4,0,"K0"); kv_loads(A1,4,1,"K1"); kv_loads(A2,4,2,"K2")
    e("s_lshl_b32 s3, s41, 9"); e("v_lshlrev_b32 v10, 5, v4"); e("v_add_u32 v10, s3, v10"); e("v_add_u32 v10, %d, v10"%L_QP)
    d_write(DD,10)
    e("s_waitcnt lgkmcnt(0)")
    kv_loads(DD,4,3,"K3"); kv_loads(B0,8,0,"V0"); kv_loads(B1,8,1,"V1"); kv_loads(B2,8,2,"V2")
    e("s_barrier")
    e("s_cmp_lg_u32 s41, 0"); e("s_cbranch_scc1 L_nocnt")
    e("v_mov_b32 v9, 0"); e("v_mov_b32 v10, 1"); e("s_mov_b64 exec, 1")
    e("global_atomic_add v9, v10, s[36:37] sc1"); e("s_mov_b64 exec, -1")
    g.lbl("L_nocnt")
    e("s_cmp_ge_u32 s41, 2"); e("s_cbranch_scc1 L_noq")
    e("v_lshlrev_b32 v9, 2, v0")
    for i in range(8): e("ds_read_b32 v%d, v9 offset:%d"%(12+i,L_QP+512*i))
    e("s_waitcnt lgkmcnt(0)")
    for i in range(1,8): e("v_add_f32 v12, v12, v%d"%(12+i))
    e("v_cvt_pk_bf16_f32 v12, v12, v12"); e("v_lshlrev_b32 v9, 1, v0"); e("ds_write_b16 v9, v12 offset:%d"%L_Q)
    e("s_waitcnt lgkmcnt(0)")
    g.lbl("L_noq")
    e("s_barrier")
    e("v_lshlrev_b32 v9, 4, v4"); e("ds_read_b128 v[28:31], v9 offset:%d"%L_Q); e("s_waitcnt lgkmcnt(0)")
    stamp(1)
    g.wait("K0"); qk(A0,5); wo_issue(0,A0)
    g.wait("K1"); qk(A1,6); wo_issue(1,A1)
    g.wait("K2"); qk(A2,7); kv_loads(A2,8,3,"V3")
    g.wait("K3"); qk(DD,8)
    stamp(2)
    e("v_max_f32 v9, v5, v6"); e("v_max3_f32 v9, v9, v7, v8")
    wavered("v_max_f32",9); e("v_readlane_b32 s50, v9, 63"); nop(1)
    for i in range(4): e("v_subrev_f32 v%d, s50, v%d"%(5+i,5+i))
    for i in range(4): e("v_exp_f32 v%d, v%d"%(5+i,5+i))
    nop(0)
    e("v_add_f32 v9, v5, v6"); e("v_add_f32 v10, v7, v8"); e("v_add_f32 v9, v9, v10")
    e("v_lshrrev_b32 v10, 1, v4"); e("v_lshlrev_b32 v10, 1, v10"); e("v_lshl_add_u32 v10, v3, 4, v10")
    e("s_lshl_b32 s3, s41, 8"); e("v_add_u32 v10, s3, v10")
    for i in range(4):
        e("v_cvt_pk_bf16_f32 v%d, v%d, v%d"%(5+i,5+i,5+i)); e("ds_write_b16 v10, v%d offset:%d"%(5+i,L_P+64*i))
    wavered("v_add_f32",9); e("v_readlane_b32 s51, v9, 63"); nop(1)
    e("v_mov_b32 v12, s50"); e("v_mov_b32 v13, s51"); e("v_mul_f32 v13, 0.5, v13")
    e("s_lshl_b32 s3, s41, 3"); e("v_mov_b32 v9, s3"); e("s_mov_b64 exec, 1")
    e("ds_write_b64 v9, v[12:13] offset:%d"%L_ML); e("s_mov_b64 exec, -1")
    e("v_lshlrev_b32 v31, 4, v3"); e("s_lshl_b32 s3, s41, 8"); e("v_add_u32 v31, s3, v31")
    e("s_waitcnt lgkmcnt(0)")
    ACC=DD
    def pv(i,ar,tag):
        e("ds_read_b128 v[24:27], v31 offset:%d"%(L_P+64*i)); g.wait(tag); e("s_waitcnt lgkmcnt(0)")
        tile_mfma(ar,24,ACC,i==0)
    pv(0,B0,"V0"); wo_issue(2,B0)
    e("v_mov_b32 v9, 0"); g.vmem("global_load_dword v30, v9, s[36:37] sc1","cnt")
    pv(1,B1,"V1"); pv(2,B2,"V2")
    g.wait("wo1"); preperm(A0,B1); preperm(A1,B2)
    ffn_issue(1,A0); ffn_issue(2,A1)
    pv(3,A2,"V3")
    stamp(3)
    e("s_lshl_b32 s3, s41, 9"); e("v_lshlrev_b32 v10, 5, v4"); e("v_add_u32 v10, s3, v10"); e("v_add_u32 v10, %d, v10"%L_QP)
    d_write(ACC,10)
    g.wait("wo2"); preperm(B0,A2)
    e("s_waitcnt lgkmcnt(0)"); e("s_barrier")
    T=B0
    e("v_mov_b32 v9, 0")
    for i in range(4): e("ds_read_b128 %s, v9 offset:%d"%(rng(T+4*i,4),L_ML+16*i))
    e("s_and_b32 s3, s41, 3"); e("s_lshl_b32 s3, s3, 5"); e("v_and_b32 v20, 31, v1"); e("v_add_u32 v20, s3, v20")
    e("v_lshlrev_b32 v9, 2, v20")
    for i in range(8): e("ds_read_b32 v%d, v9 offset:%d"%(12+i,L_QP+512*i))
    e("s_waitcnt lgkmcnt(8)")
    e("v_max3_f32 v10, v%d, v%d, v%d"%(T,T+2,T+4)); e("v_max3_f32 v11, v%d, v%d, v%d"%(T+6,T+8,T+10))
    e("v_max3_f32 v10, v10, v%d, v%d"%(T+12,T+14)); e("v_max_f32 v10, v10, v11")
    for i in range(8): e("v_sub_f32 v%d, v%d, v10"%(T+2*i,T+2*i))
    for i in range(8): e("v_exp_f32 v%d, v%d"%(T+2*i,T+2*i))
    nop(0)
    e("v_mul_f32 v11, v%d, v%d"%(T,T+1)); e("v_mul_f32 v21, v%d, v%d"%(T+2,T+3))
    for i in range(2,8): e("v_fmac_f32 v%d, v%d, v%d"%(11 if i%2==0 else 21,T+2*i,T+2*i+1))
    e("v_add_f32 v11, v11, v21")
    e("s_waitcnt lgkmcnt(0)")
    e("v_mul_f32 v12, v12, v%d"%T); e("v_mul_f32 v13, v13, v%d"%(T+2))
    e("v_rcp_f32 v22, v11")
    for i in range(2,8): e("v_fmac_f32 v%d, v%d, v%d"%(12+(i&1),12+i,T+2*i))
    e("v_add_f32 v12, v12, v13"); e("v_mul_f32 v12, v12, v22")
    e("v_cvt_pk_bf16_f32 v12, v12, v12"); e("v_lshlrev_b32 v9, 1, v20"); e("ds_write_b16 v9, v12 offset:%d"%L_Q)
    e("s_cmp_lg_u32 s41, 0"); e("s_cbranch_scc1 L_noo")
    e("v_or_b32 v14, 1, v10"); e("v_or_b32 v15, 1, v11"); e("v_mov_b32 v9, s47"); e("v_cmp_eq_u32 vcc, 0, v0"); sel_oob(9)
    e("buffer_store_dwordx2 v[14:15], v9, s[28:31], 0 offen sc1")
    g.lbl("L_noo")
    e("s_and_b32 s3, s41, 3"); e("s_lshl_b32 s3, s3, 6"); e("v_lshlrev_b32 v9, 4, v3"); e("v_add_u32 v9, s3, v9")
    e("s_waitcnt lgkmcnt(0)")
    e("ds_read_b128 v[24:27], v9 offset:%d"%L_Q)
    e("s_and_b32 s3, s41, 3"); e("s_mul_i32 s3, s3, 3072"); e("s_lshr_b32 s45, s41, 2"); e("s_mul_i32 s45, s45, 1536")
    e("s_add_u32 s3, s3, s45"); e("s_add_u32 s3, s3, %d"%L_YP); e("v_lshlrev_b32 v10, 5, v4"); e("v_add_u32 v10, s3, v10")
    e("v_add_u32 v22, 512, v10"); e("v_add_u32 v23, 1024, v10")
    e("s_waitcnt lgkmcnt(0)")
    mfma_only(B1,24,DD); mfma_only(B2,24,B0)
    d_write(DD,10,short=True); mfma_only(A2,24,B1); d_write(B0,22,short=True); d_write(B1,23)
    e("s_waitcnt lgkmcnt(0)"); e("s_barrier")
    y_addr(9,10); e("v_cmp_gt_u32 vcc, 160, v0"); sel_oob(9)
    e("s_cmp_ge_u32 s41, 3"); e("s_cbranch_scc1 L_noy")
    e("v_lshlrev_b32 v10, 4, v0")
    for i in range(4): e("ds_read_b128 %s, v10 offset:%d"%(rng(DD+4*i,4),L_YP+3072*i))
    e("s_waitcnt lgkmcnt(0)")
    for x in range(4):
        e("v_add_f32 v%d, v%d, v%d"%(DD+x,DD+x,DD+4+x)); e("v_add_f32 v%d, v%d, v%d"%(DD+8+x,DD+8+x,DD+12+x))
        e("v_add_f32 v%d, v%d, v%d"%(DD+x,DD+x,DD+8+x)); e("v_or_b32 v%d, 1, v%d"%(DD+x,DD+x))
    e("buffer_store_dwordx4 %s, v9, s[28:31], 0 offen sc1"%rng(DD,4))
    g.lbl("L_noy")
    stamp(4)
    e("s_cmp_ge_u32 s2, 174"); e("s_cbranch_scc1 L_end")
    g.wait("cnt"); e("s_mov_b32 s52, 0")
    g.lbl("L_cchk")
    e("v_readfirstlane_b32 s3, v30"); e("s_cmp_eq_u32 s3, 256"); e("s_cbranch_scc1 L_cok")
    e("s_add_u32 s52, s52, 1"); e("s_cmp_gt_u32 s52, %d"%POLLMAX); e("s_cbranch_scc1 L_cok")
    e("v_mov_b32 v9, 0"); e("global_load_dword v30, v9, s[36:37] sc1"); e("s_waitcnt vmcnt(0)"); e("s_branch L_cchk")
    g.lbl("L_cok")
    e("s_cmp_ge_u32 s2, 134"); e("s_cbranch_scc1 L_hopC")
    e("s_cmp_ge_u32 s2, 80"); e("s_cbranch_scc1 L_ffn")
    hopA(); ffn(); hopC()
    g.lbl("L_end"); stamp_out(); g.lbl("L_end2"); e("s_endpgm")
POLLMAX=20000
def poll(loads,words,extra=None):
    lp=g.newlbl("poll"); dn=g.newlbl("done")
    e("s_mov_b32 s52, 0"); g.lbl(lp)
    for l in loads: e(l)
    e("s_waitcnt vmcnt(0)")
    e("v_and_b32 v11, v%d, v%d"%(words[0],words[1]))
    for w in words[2:]: e("v_and_b32 v11, v11, v%d"%w)
    if extra is not None: e("v_or_b32 v11, v11, v%d"%extra)
    e("v_and_b32 v11, 1, v11"); e("v_cmp_ne_u32 vcc, 1, v11"); e("s_add_u32 s52, s52, 1")
    e("s_cmp_gt_u32 s52, %d"%POLLMAX); e("s_cbranch_scc1 %s"%dn)
    nop(1); e("s_and_b64 exec, exec, vcc"); e("s_cbranch_scc1 %s"%lp)
    g.lbl(dn)
    e("s_mov_b64 exec, -1")
    stamp(5)
def hopA():
    e("s_cmp_ge_u32 s2, 40"); e("s_cselect_b32 s48, 1, 0")
    e("s_lshl_b32 s3, s2, 13"); e("v_lshlrev_b32 v9, 4, v0"); e("v_add_u32 v9, s3, v9")
    e("s_lshl_b32 s3, s48, 10"); e("s_add_u32 s3, s3, %d"%W_ML)
    e("v_lshrrev_b32 v10, 4, v0"); e("v_lshlrev_b32 v10, 5, v10"); e("v_add_u32 v10, s3, v10")
    e("v_lshrrev_b32 v28, 2, v0"); e("v_lshlrev_b32 v28, 3, v28"); e("v_add_u32 v28, s3, v28")
    e("s_lshl_b32 s3, s48, 0"); e("s_sub_u32 s3, s3, s38"); e("s_mul_i32 s3, s3, 1280")
    e("s_mul_i32 s45, s48, 40"); e("s_sub_u32 s45, s2, s45"); e("s_lshl_b32 s45, s45, 5"); e("s_add_u32 s3, s3, s45")
    e("s_ashr_i32 s45, s3, 31"); e("s_add_u32 s58, s32, s3"); e("s_addc_u32 s59, s33, s45")
    e("v_lshlrev_b32 v29, 1, v4"); e("global_load_ushort v27, v29, s[58:59]")
    poll(["buffer_load_dwordx4 v[12:15], v9, s[28:31], 0 offen sc1","buffer_load_dwordx4 v[16:19], v10, s[28:31], 0 offen sc1",
          "buffer_load_dwordx4 v[20:23], v10, s[28:31], 0 offen offset:16 sc1","buffer_load_dwordx2 v[24:25], v28, s[28:31], 0 offen sc1"],
         list(range(12,26)))
    e("v_max3_f32 v10, v16, v18, v20"); e("v_max_f32 v10, v10, v22")
    for r in (16,18,20,22,24): e("v_sub_f32 v%d, v%d, v10"%(r,r))
    for r in (16,18,20,22,24): e("v_exp_f32 v%d, v%d"%(r,r))
    nop(0)
    e("v_mul_f32 v11, v16, v17"); e("v_fmac_f32 v11, v18, v19"); e("v_fmac_f32 v11, v20, v21"); e("v_fmac_f32 v11, v22, v23")
    e("v_rcp_f32 v11, v11"); e("v_mul_f32 v24, v24, v25"); nop(0); e("v_mul_f32 v24, v24, v11")
    for x in range(4): e("v_mul_f32 v%d, v%d, v24"%(12+x,12+x))
    for r in (4,8):
        nop(1)
        for x in range(4): e("v_add_f32_dpp v%d, v%d, v%d row_ror:%d row_mask:0xf bank_mask:0xf"%(12+x,12+x,12+x,r))
    e("v_lshrrev_b32 v9, 4, v0"); e("v_lshlrev_b32 v9, 6, v9"); e("v_lshl_add_u32 v9, v4, 4, v9")
    e("v_cmp_gt_u32 vcc, 4, v4"); e("s_and_saveexec_b64 s[94:95], vcc")
    e("ds_write_b128 v9, v[12:15] offset:%d"%L_T); e("s_mov_b64 exec, -1")
    e("s_waitcnt lgkmcnt(0)"); e("s_barrier")
    e("s_cmp_lg_u32 s41, 0"); e("s_cbranch_scc1 L_end")
    e("v_lshlrev_b32 v9, 9, v3"); e("v_lshl_add_u32 v9, v4, 2, v9")
    for i in range(8): e("ds_read_b32 v%d, v9 offset:%d"%(12+i,L_T+64*i))
    e("s_waitcnt lgkmcnt(0)")
    for i in range(1,8): e("v_add_f32 v12, v12, v%d"%(12+i))
    xrow(12,13)
    bf16r(12,12); e("v_lshlrev_b32 v27, 16, v27"); e("v_add_f32 v12, v12, v27"); bf16r(12,12); e("v_or_b32 v12, 1, v12")
    e("s_lshl_b32 s3, s2, 6"); e("s_add_u32 s3, s3, %d"%W_H); e("v_lshlrev_b32 v9, 2, v4"); e("v_add_u32 v9, s3, v9")
    e("v_cmp_gt_u32 vcc, 16, v1"); sel_oob(9)
    e("buffer_store_dword v12, v9, s[28:31], 0 offen sc1")
    e("s_branch L_end")
def xrow(v,t,only32=False):
    if not only32:
        e("v_mov_b32 v%d, v%d"%(t,v)); nop(1); e("v_permlane16_swap_b32 v%d, v%d"%(v,t)); nop(1); e("v_add_f32 v%d, v%d, v%d"%(v,v,t))
    e("v_mov_b32 v%d, v%d"%(t,v)); nop(1); e("v_permlane32_swap_b32 v%d, v%d"%(v,t)); nop(1); e("v_add_f32 v%d, v%d, v%d"%(v,v,t))
def ffn():
    g.lbl("L_ffn")
    e("s_cmp_ge_u32 s41, 5"); e("s_cbranch_scc1 L_ffn_idle0")
    e("s_sub_u32 s48, s2, 80")
    e("s_waitcnt vmcnt(0)"); preperm(A0,B0); preperm(A1,B1)
    e("v_lshrrev_b32 v9, 5, v1"); e("v_mul_u32_u24 v9, 2560, v9"); e("v_and_b32 v10, 31, v1"); e("v_lshl_add_u32 v9, v10, 4, v9")
    e("s_lshl_b32 s3, s41, 9"); e("s_add_u32 s3, s3, %d"%W_H); e("v_add_u32 v9, s3, v9")
    e("v_lshlrev_b32 v21, 4, v1"); e("s_lshl_b32 s3, s41, 10"); e("v_add_u32 v22, s3, v21")
    e("v_lshrrev_b32 v23, 5, v1"); e("v_mul_u32_u24 v23, 1280, v23"); e("v_lshl_add_u32 v23, v10, 3, v23")
    e("s_lshl_b32 s3, s41, 8"); e("v_add_u32 v23, s3, v23")
    own=list(range(A0,A0+4))
    poll(["buffer_load_dwordx4 %s, v9, s[28:31], 0 offen sc1"%rng(A0,4)],own)
    for v in own: e("v_and_b32 v%d, 0xffff0000, v%d"%(v,v))
    e("ds_write_b128 v22, %s offset:%d"%(rng(A0,4),L_YP)); e("s_waitcnt lgkmcnt(0)")
    g.lbl("L_ffn_idle0")
    e("s_barrier")
    e("s_cmp_ge_u32 s41, 5"); e("s_cbranch_scc1 L_ffn_idle")
    vals=list(range(DD,DD+20))
    for i in range(5): e("ds_read_b128 %s, v21 offset:%d"%(rng(DD+4*i,4),L_YP+1024*i))
    e("s_waitcnt lgkmcnt(0)")
    layernorm(vals,True,12,norm=own)
    e("v_cvt_pk_bf16_f32 v12, v%d, v%d"%(A0,A0+1)); e("v_cvt_pk_bf16_f32 v13, v%d, v%d"%(A0+2,A0+3))
    e("ds_write_b64 v23, v[12:13] offset:%d"%L_LN)
    e("s_waitcnt lgkmcnt(0)")
    e("v_and_b32 v9, 1, v4"); e("v_mul_u32_u24 v9, 1280, v9"); e("v_lshrrev_b32 v10, 2, v4"); e("v_lshl_add_u32 v9, v10, 6, v9")
    e("v_lshl_add_u32 v9, v3, 4, v9"); e("s_lshl_b32 s3, s41, 8"); e("v_add_u32 v9, s3, v9")
    e("ds_read_b128 v[24:27], v9 offset:%d"%L_LN); e("s_waitcnt lgkmcnt(0)")
    mfma_only(B0,24,DD)
    e("v_lshrrev_b32 v10, 2, v4"); e("v_cmp_eq_u32 vcc, v10, v3")
    e("v_lshlrev_b32 v9, 8, v10"); e("v_and_b32 v10, 3, v4"); e("v_lshl_add_u32 v9, v10, 5, v9")
    e("s_lshl_b32 s3, s41, 10"); e("v_add_u32 v9, s3, v9"); e("v_add_u32 v9, %d, v9"%L_T)
    nop(7); e("s_and_saveexec_b64 s[94:95], vcc")
    for b in range(2):
        for c in range(0,8,2):
            e("ds_write2_b32 v9, v%d, v%d offset0:%d offset1:%d"%(DD+4*c+b,DD+4*(c+1)+b,32*b+c,32*b+c+1))
    e("s_mov_b64 exec, -1"); e("s_waitcnt lgkmcnt(0)")
    g.lbl("L_ffn_idle")
    e("s_barrier")
    e("s_cmp_ge_u32 s41, 5"); e("s_cbranch_scc1 L_end")
    e("v_lshlrev_b32 v9, 2, v1")
    for i in range(20): e("ds_read_b32 v%d, v9 offset:%d"%(DD+i,L_T+256*i))
    e("s_waitcnt lgkmcnt(0)")
    for i in range(10): e("v_add_f32 v%d, v%d, v%d"%(DD+i,DD+i,DD+10+i))
    for i in range(5): e("v_add_f32 v%d, v%d, v%d"%(DD+i,DD+i,DD+5+i))
    for i in range(1,5): e("v_add_f32 v%d, v%d, v%d"%(DD,DD,DD+i))
    e("v_max_f32 v%d, 0, v%d"%(DD,DD)); e("v_cvt_pk_bf16_f32 v12, v%d, v%d"%(DD,DD))
    e("v_lshlrev_b32 v9, 1, v1"); e("ds_write_b16 v9, v12 offset:%d"%L_Q); e("s_waitcnt lgkmcnt(0)")
    e("v_and_b32 v9, 1, v4"); e("v_lshlrev_b32 v9, 6, v9"); e("v_lshl_add_u32 v9, v3, 4, v9")
    e("ds_read_b128 v[24:27], v9 offset:%d"%L_Q); e("s_waitcnt lgkmcnt(0)")
    mfma_only(B1,24,DD)
    e("v_mul_u32_u24 v9, 20, v3"); e("v_lshrrev_b32 v10, 2, v4"); e("v_add_u32 v9, v9, v10"); e("s_lshl_b32 s3, s41, 2")
    e("v_add_u32 v9, s3, v9"); e("v_mul_u32_u24 v9, 54, v9"); e("v_add_u32 v9, s48, v9"); e("v_lshlrev_b32 v9, 7, v9")
    e("v_and_b32 v10, 3, v4"); e("v_lshl_add_u32 v9, v10, 5, v9"); e("v_add_u32 v9, %d, v9"%W_Z)
    e("v_cmp_gt_u32 vcc, 32, v1"); sel_oob(9)
    e("v_cmp_eq_u32 vcc, 1, v3"); nop(7)
    for c in range(8):
        e("v_cndmask_b32 v%d, v%d, v%d, vcc"%(12+c,DD+4*c,DD+4*c+1));
    for c in range(8): e("v_or_b32 v%d, 1, v%d"%(12+c,12+c))
    e("buffer_store_dwordx4 v[12:15], v9, s[28:31], 0 offen sc1")
    e("buffer_store_dwordx4 v[16:19], v9, s[28:31], 0 offen offset:16 sc1")
    e("s_branch L_end")
def hopC():
    g.lbl("L_hopC")
    e("s_sub_u32 s48, s2, 134")
    e("s_mul_i32 s3, s48, 6912"); e("s_add_u32 s3, s3, %d"%W_Z); e("v_lshlrev_b32 v9, 4, v0"); e("v_add_u32 v9, s3, v9")
    e("v_cmp_gt_u32 vcc, 432, v0"); sel_oob(9)
    e("v_cmp_le_u32 vcc, 432, v0"); nop(1); e("v_cndmask_b32 v28, 0, 1, vcc")
    e("s_lshl_b32 s3, s48, 7"); e("s_add_u32 s3, s3, %d"%W_H); e("v_and_b32 v10, 31, v1"); e("v_lshl_add_u32 v10, v10, 2, s3")
    e("v_mov_b32 v17, -1");
    poll(["buffer_load_dwordx4 v[12:15], v9, s[28:31], 0 offen sc1"],[12,13,14,15],28)
    e("buffer_load_dword v27, v10, s[28:31], 0 offen sc1")
    nop(1)
    for x in range(4): e("v_add_f32_dpp v%d, v%d, v%d row_ror:8 row_mask:0xf bank_mask:0xf"%(12+x,12+x,12+x))
    e("v_lshrrev_b32 v9, 4, v0"); e("v_lshlrev_b32 v9, 7, v9"); e("v_lshl_add_u32 v9, v4, 4, v9")
    e("v_cmp_gt_u32 vcc, 8, v4"); e("s_and_saveexec_b64 s[94:95], vcc")
    e("ds_write_b128 v9, v[12:15] offset:%d"%L_T); e("s_mov_b64 exec, -1")
    e("s_waitcnt lgkmcnt(0)"); e("s_barrier")
    e("s_cmp_lg_u32 s41, 0"); e("s_cbranch_scc1 L_end")
    e("v_lshrrev_b32 v9, 5, v1"); e("v_lshlrev_b32 v9, 11, v9"); e("v_and_b32 v11, 31, v1"); e("v_lshl_add_u32 v9, v11, 2, v9")
    for i in range(16): e("ds_read_b32 v%d, v9 offset:%d"%(DD+i,L_T+128*i))
    e("s_waitcnt lgkmcnt(0)")
    for i in range(8): e("v_add_f32 v%d, v%d, v%d"%(DD+i,DD+i,DD+8+i))
    for i in range(4): e("v_add_f32 v%d, v%d, v%d"%(DD+i,DD+i,DD+4+i))
    for i in range(1,4): e("v_add_f32 v%d, v%d, v%d"%(DD,DD,DD+i))
    xrow(DD,DD+1,True)
    e("s_waitcnt vmcnt(0)")
    bf16r(DD,DD); e("v_and_b32 v27, 0xffff0000, v27"); e("v_add_f32 v%d, v%d, v27"%(DD,DD))
    e("v_cvt_pk_bf16_f32 v12, v%d, v%d"%(DD,DD))
    e("s_lshl_b32 s3, s48, 6"); e("v_lshlrev_b32 v9, 1, v11"); e("v_add_u32 v9, s3, v9")
    e("s_mov_b64 exec, 0xffffffff"); e("global_store_short v9, v12, s[34:35]"); e("s_mov_b64 exec, -1")
HDR=open('cdna_kernels/%s.s.ref'%NAME).read().split("; @launch")[0]
def build(path):
    main()
    out=HDR+"; @launch grid=(256,1,1) block=(512,1,1) lds=%d\n"%L_SIZE
    out+='.amdgcn_target "amdgcn-amd-amdhsa--gfx950"\n.text\n.globl %s_kernel\n.p2align 8\n.type %s_kernel,@function\n%s_kernel:\n'%(NAME,NAME,NAME)
    out+="\n".join(g.L)+"\n"
    out+='.section .rodata,"a"\n.p2align 6\n.amdhsa_kernel %s_kernel\n  .amdhsa_next_free_vgpr 256\n  .amdhsa_next_free_sgpr 102\n  .amdhsa_accum_offset 256\n  .amdhsa_group_segment_fixed_size 0\n  .amdhsa_kernarg_size 88\n  .amdhsa_user_sgpr_count 2\n  .amdhsa_user_sgpr_kernarg_segment_ptr 1\n  .amdhsa_system_sgpr_workgroup_id_x 1\n.end_amdhsa_kernel\n'%NAME
    open(path,'w').write(out)
if __name__=="__main__":
    import sys
    build(sys.argv[1] if len(sys.argv)>1 else 'cdna_kernels/%s.s'%NAME)
```

```python
from g1 import *
import g1
def main():
    prologue(); stamp(0)
    for k in range(1,7):
        if DBG: e("s_mov_b32 s%d, s96"%SREG[k])
    zero_phase()
    e("v_lshlrev_b32 v9, 2, v1")
    for i in range(5): g.vmem("global_load_dword v%d, v9, s[32:33] offset:%d"%(24+i,256*i),"x")
    wq_issue(0,B0); wq_issue(1,B1); wq_issue(2,B2)
    NOK=os.environ.get("NOK")
    if not NOK: kv_loads(A0,4,0,"K0"); kv_loads(A1,4,1,"K1"); kv_loads(A2,4,2,"K2")
    g.wait("x")
    vals=list(range(DD,DD+10))
    for i in range(5):
        e("v_lshlrev_b32 v%d, 16, v%d"%(DD+2*i,24+i)); e("v_and_b32 v%d, 0xffff0000, v%d"%(DD+2*i+1,24+i))
    layernorm(vals,False,12)
    e("v_lshlrev_b32 v9, 2, v1")
    for i in range(5):
        e("v_cvt_pk_bf16_f32 v%d, v%d, v%d"%(24+i,DD+2*i,DD+2*i+1))
        e("ds_write_b32 v9, v%d offset:%d"%(24+i,L_LN+256*i))
    e("s_waitcnt lgkmcnt(0)")
    for i,ar in enumerate((B0,B1,B2)):
        e("s_add_u32 s3, s41, %d"%(8*i)); e("s_cmp_lt_u32 s3, 20"); e("s_cselect_b32 s3, s3, 0"); e("s_lshl_b32 s3, s3, 6")
        e("v_lshlrev_b32 v9, 4, v3"); e("v_add_u32 v9, s3, v9"); e("ds_read_b128 v[24:27], v9 offset:%d"%L_LN)
        g.wait("wq%d"%i); e("s_waitcnt lgkmcnt(0)")
        tile_mfma(ar,24,DD,i==0)
    stamp(6)
    if NOK: kv_loads(A0,4,0,"K0"); kv_loads(A1,4,1,"K1"); kv_loads(A2,4,2,"K2")
    e("s_lshl_b32 s3, s41, 9"); e("v_lshlrev_b32 v10, 5, v4"); e("v_add_u32 v10, s3, v10"); e("v_add_u32 v10, %d, v10"%L_QP)
    d_write(DD,10)
    e("s_waitcnt lgkmcnt(0)")
    kv_loads(DD,4,3,"K3"); kv_loads(B0,8,0,"V0"); kv_loads(B1,8,1,"V1"); kv_loads(B2,8,2,"V2")
    e("s_barrier")
    e("s_cmp_lg_u32 s41, 0"); e("s_cbranch_scc1 L_nocnt")
    e("v_mov_b32 v9, 0"); e("v_mov_b32 v10, 1"); e("s_mov_b64 exec, 1")
    e("global_atomic_add v9, v10, s[36:37] sc1"); e("s_mov_b64 exec, -1")
    g.lbl("L_nocnt")
    e("s_cmp_ge_u32 s41, 2"); e("s_cbranch_scc1 L_noq")
    e("v_lshlrev_b32 v9, 2, v0")
    for i in range(8): e("ds_read_b32 v%d, v9 offset:%d"%(12+i,L_QP+512*i))
    e("s_waitcnt lgkmcnt(0)")
    for i in range(1,8): e("v_add_f32 v12, v12, v%d"%(12+i))
    e("v_cvt_pk_bf16_f32 v12, v12, v12"); e("v_lshlrev_b32 v9, 1, v0"); e("ds_write_b16 v9, v12 offset:%d"%L_Q)
    e("s_waitcnt lgkmcnt(0)")
    g.lbl("L_noq")
    e("s_barrier")
    e("v_lshlrev_b32 v9, 4, v4"); e("ds_read_b128 v[28:31], v9 offset:%d"%L_Q); e("s_waitcnt lgkmcnt(0)")
    stamp(1)
    g.wait("K0"); qk(A0,5); wo_issue(0,A0)
    g.wait("K1"); qk(A1,6); wo_issue(1,A1)
    g.wait("K2"); qk(A2,7); kv_loads(A2,8,3,"V3")
    g.wait("K3"); qk(DD,8)
    stamp(2)
    e("v_max_f32 v9, v5, v6"); e("v_max3_f32 v9, v9, v7, v8")
    wavered("v_max_f32",9); e("v_readlane_b32 s50, v9, 63"); nop(1)
    for i in range(4): e("v_subrev_f32 v%d, s50, v%d"%(5+i,5+i))
    for i in range(4): e("v_exp_f32 v%d, v%d"%(5+i,5+i))
    nop(0)
    e("v_add_f32 v9, v5, v6"); e("v_add_f32 v10, v7, v8"); e("v_add_f32 v9, v9, v10")
    e("v_lshrrev_b32 v10, 1, v4"); e("v_lshlrev_b32 v10, 1, v10"); e("v_lshl_add_u32 v10, v3, 4, v10")
    e("s_lshl_b32 s3, s41, 8"); e("v_add_u32 v10, s3, v10")
    for i in range(4):
        e("v_cvt_pk_bf16_f32 v%d, v%d, v%d"%(5+i,5+i,5+i)); e("ds_write_b16 v10, v%d offset:%d"%(5+i,L_P+64*i))
    wavered("v_add_f32",9); e("v_readlane_b32 s51, v9, 63"); nop(1)
    e("v_mov_b32 v12, s50"); e("v_mov_b32 v13, s51"); e("v_mul_f32 v13, 0.5, v13")
    e("s_lshl_b32 s3, s41, 3"); e("v_mov_b32 v9, s3"); e("s_mov_b64 exec, 1")
    e("ds_write_b64 v9, v[12:13] offset:%d"%L_ML); e("s_mov_b64 exec, -1")
    e("v_lshlrev_b32 v31, 4, v3"); e("s_lshl_b32 s3, s41, 8"); e("v_add_u32 v31, s3, v31")
    e("s_waitcnt lgkmcnt(0)")
    ACC=DD
    def pv(i,ar,tag):
        e("ds_read_b128 v[24:27], v31 offset:%d"%(L_P+64*i)); g.wait(tag); e("s_waitcnt lgkmcnt(0)")
        tile_mfma(ar,24,ACC,i==0)
    pv(0,B0,"V0"); wo_issue(2,B0)
    e("v_mov_b32 v9, 0"); g.vmem("global_load_dword v30, v9, s[36:37] sc1","cnt")
    pv(1,B1,"V1"); pv(2,B2,"V2")
    g.wait("wo1"); preperm(A0,B1); preperm(A1,B2)
    ffn_issue(1,A0); ffn_issue(2,A1)
    pv(3,A2,"V3")
    stamp(3)
    e("s_lshl_b32 s3, s41, 9"); e("v_lshlrev_b32 v10, 5, v4"); e("v_add_u32 v10, s3, v10"); e("v_add_u32 v10, %d, v10"%L_QP)
    d_write(ACC,10)
    g.wait("wo2"); preperm(B0,A2)
    e("s_waitcnt lgkmcnt(0)"); e("s_barrier")
    T=B0
    e("v_mov_b32 v9, 0")
    for i in range(4): e("ds_read_b128 %s, v9 offset:%d"%(rng(T+4*i,4),L_ML+16*i))
    e("s_and_b32 s3, s41, 3"); e("s_lshl_b32 s3, s3, 5"); e("v_and_b32 v20, 31, v1"); e("v_add_u32 v20, s3, v20")
    e("v_lshlrev_b32 v9, 2, v20")
    for i in range(8): e("ds_read_b32 v%d, v9 offset:%d"%(12+i,L_QP+512*i))
    e("s_waitcnt lgkmcnt(8)")
    e("v_max3_f32 v10, v%d, v%d, v%d"%(T,T+2,T+4)); e("v_max3_f32 v11, v%d, v%d, v%d"%(T+6,T+8,T+10))
    e("v_max3_f32 v10, v10, v%d, v%d"%(T+12,T+14)); e("v_max_f32 v10, v10, v11")
    for i in range(8): e("v_sub_f32 v%d, v%d, v10"%(T+2*i,T+2*i))
    for i in range(8): e("v_exp_f32 v%d, v%d"%(T+2*i,T+2*i))
    nop(0)
    e("v_mul_f32 v11, v%d, v%d"%(T,T+1)); e("v_mul_f32 v21, v%d, v%d"%(T+2,T+3))
    for i in range(2,8): e("v_fmac_f32 v%d, v%d, v%d"%(11 if i%2==0 else 21,T+2*i,T+2*i+1))
    e("v_add_f32 v11, v11, v21")
    e("s_waitcnt lgkmcnt(0)")
    e("v_mul_f32 v12, v12, v%d"%T); e("v_mul_f32 v13, v13, v%d"%(T+2))
    e("v_rcp_f32 v22, v11")
    for i in range(2,8): e("v_fmac_f32 v%d, v%d, v%d"%(12+(i&1),12+i,T+2*i))
    e("v_add_f32 v12, v12, v13"); e("v_mul_f32 v12, v12, v22")
    e("v_cvt_pk_bf16_f32 v12, v12, v12"); e("v_lshlrev_b32 v9, 1, v20"); e("ds_write_b16 v9, v12 offset:%d"%L_Q)
    e("s_cmp_lg_u32 s41, 0"); e("s_cbranch_scc1 L_noo")
    e("v_or_b32 v14, 1, v10"); e("v_or_b32 v15, 1, v11"); e("v_mov_b32 v9, s47"); e("v_cmp_eq_u32 vcc, 0, v0"); sel_oob(9)
    e("buffer_store_dwordx2 v[14:15], v9, s[28:31], 0 offen sc1")
    g.lbl("L_noo")
    e("s_and_b32 s3, s41, 3"); e("s_lshl_b32 s3, s3, 6"); e("v_lshlrev_b32 v9, 4, v3"); e("v_add_u32 v9, s3, v9")
    e("s_waitcnt lgkmcnt(0)")
    e("ds_read_b128 v[24:27], v9 offset:%d"%L_Q)
    e("s_and_b32 s3, s41, 3"); e("s_mul_i32 s3, s3, 3072"); e("s_lshr_b32 s45, s41, 2"); e("s_mul_i32 s45, s45, 1536")
    e("s_add_u32 s3, s3, s45"); e("s_add_u32 s3, s3, %d"%L_YP); e("v_lshlrev_b32 v10, 5, v4"); e("v_add_u32 v10, s3, v10")
    e("v_add_u32 v22, 512, v10"); e("v_add_u32 v23, 1024, v10")
    e("s_waitcnt lgkmcnt(0)")
    mfma_only(B1,24,DD); mfma_only(B2,24,B0)
    d_write(DD,10,short=True); mfma_only(A2,24,B1); d_write(B0,22,short=True); d_write(B1,23)
    e("s_waitcnt lgkmcnt(0)"); e("s_barrier")
    y_addr(9,10); e("v_cmp_gt_u32 vcc, 160, v0"); sel_oob(9)
    e("s_cmp_ge_u32 s41, 3"); e("s_cbranch_scc1 L_noy")
    e("v_lshlrev_b32 v10, 4, v0")
    for i in range(4): e("ds_read_b128 %s, v10 offset:%d"%(rng(DD+4*i,4),L_YP+3072*i))
    e("s_waitcnt lgkmcnt(0)")
    for x in range(4):
        e("v_add_f32 v%d, v%d, v%d"%(DD+x,DD+x,DD+4+x)); e("v_add_f32 v%d, v%d, v%d"%(DD+8+x,DD+8+x,DD+12+x))
        e("v_add_f32 v%d, v%d, v%d"%(DD+x,DD+x,DD+8+x)); e("v_or_b32 v%d, 1, v%d"%(DD+x,DD+x))
    e("buffer_store_dwordx4 %s, v9, s[28:31], 0 offen sc1"%rng(DD,4))
    g.lbl("L_noy")
    stamp(4)
    e("s_cmp_ge_u32 s2, 174"); e("s_cbranch_scc1 L_end")
    g.wait("cnt"); e("s_mov_b32 s52, 0")
    g.lbl("L_cchk")
    e("v_readfirstlane_b32 s3, v30"); e("s_cmp_eq_u32 s3, 256"); e("s_cbranch_scc1 L_cok")
    e("s_add_u32 s52, s52, 1"); e("s_cmp_gt_u32 s52, %d"%POLLMAX); e("s_cbranch_scc1 L_cok")
    e("v_mov_b32 v9, 0"); e("global_load_dword v30, v9, s[36:37] sc1"); e("s_waitcnt vmcnt(0)"); e("s_branch L_cchk")
    g.lbl("L_cok")
    e("s_cmp_ge_u32 s2, 134"); e("s_cbranch_scc1 L_hopC")
    e("s_cmp_ge_u32 s2, 80"); e("s_cbranch_scc1 L_ffn")
    hopA(); ffn(); hopC()
    g.lbl("L_end"); stamp_out(); g.lbl("L_end2"); e("s_endpgm")
POLLMAX=20000
def poll(loads,words,extra=None):
    lp=g.newlbl("poll"); dn=g.newlbl("done")
    e("s_mov_b32 s52, 0"); g.lbl(lp)
    for l in loads: e(l)
    e("s_waitcnt vmcnt(0)")
    e("v_and_b32 v11, v%d, v%d"%(words[0],words[1]))
    for w in words[2:]: e("v_and_b32 v11, v11, v%d"%w)
    if extra is not None: e("v_or_b32 v11, v11, v%d"%extra)
    e("v_and_b32 v11, 1, v11"); e("v_cmp_ne_u32 vcc, 1, v11"); e("s_add_u32 s52, s52, 1")
    e("s_cmp_gt_u32 s52, %d"%POLLMAX); e("s_cbranch_scc1 %s"%dn)
    nop(1); e("s_and_b64 exec, exec, vcc"); e("s_cbranch_scc1 %s"%lp)
    g.lbl(dn)
    e("s_mov_b64 exec, -1")
    stamp(5)
def hopA():
    e("s_cmp_ge_u32 s2, 40"); e("s_cselect_b32 s48, 1, 0")
    e("s_lshl_b32 s3, s2, 13"); e("v_lshlrev_b32 v9, 4, v0"); e("v_add_u32 v9, s3, v9")
    e("s_lshl_b32 s3, s48, 10"); e("s_add_u32 s3, s3, %d"%W_ML)
    e("v_lshrrev_b32 v10, 4, v0"); e("v_lshlrev_b32 v10, 5, v10"); e("v_add_u32 v10, s3, v10")
    e("v_lshrrev_b32 v28, 2, v0"); e("v_lshlrev_b32 v28, 3, v28"); e("v_add_u32 v28, s3, v28")
    e("s_lshl_b32 s3, s48, 0"); e("s_sub_u32 s3, s3, s38"); e("s_mul_i32 s3, s3, 1280")
    e("s_mul_i32 s45, s48, 40"); e("s_sub_u32 s45, s2, s45"); e("s_lshl_b32 s45, s45, 5"); e("s_add_u32 s3, s3, s45")
    e("s_ashr_i32 s45, s3, 31"); e("s_add_u32 s58, s32, s3"); e("s_addc_u32 s59, s33, s45")
    e("v_lshlrev_b32 v29, 1, v4"); e("global_load_ushort v27, v29, s[58:59]")
    R=A2
    e("v_lshrrev_b32 v12, 4, v0"); e("v_lshlrev_b32 v12, 6, v12"); e("v_lshl_add_u32 v%d, v4, 4, v12"%R)
    e("v_cmp_gt_u32 s[56:57], 4, v4")
    e("v_lshlrev_b32 v12, 9, v3"); e("v_lshl_add_u32 v%d, v4, 2, v12"%(R+1))
    e("s_lshl_b32 s3, s2, 6"); e("s_add_u32 s3, s3, %d"%W_H); e("v_lshlrev_b32 v12, 2, v4"); e("v_add_u32 v12, s3, v12")
    e("v_cmp_gt_u32 vcc, 16, v1"); sel_oob(12); e("v_mov_b32 v%d, v12"%(R+2))
    poll(["buffer_load_dwordx4 v[12:15], v9, s[28:31], 0 offen sc1","buffer_load_dwordx4 v[16:19], v10, s[28:31], 0 offen sc1",
          "buffer_load_dwordx4 v[20:23], v10, s[28:31], 0 offen offset:16 sc1","buffer_load_dwordx2 v[24:25], v28, s[28:31], 0 offen sc1"],
         list(range(12,26)))
    e("v_max3_f32 v10, v16, v18, v20"); e("v_max_f32 v10, v10, v22")
    for r in (16,18,20,22,24): e("v_sub_f32 v%d, v%d, v10"%(r,r))
    for r in (16,18,20,22,24): e("v_exp_f32 v%d, v%d"%(r,r))
    nop(0)
    e("v_mul_f32 v11, v16, v17"); e("v_fmac_f32 v11, v18, v19"); e("v_fmac_f32 v11, v20, v21"); e("v_fmac_f32 v11, v22, v23")
    e("v_rcp_f32 v11, v11"); e("v_mul_f32 v24, v24, v25"); nop(0); e("v_mul_f32 v24, v24, v11")
    for x in range(4): e("v_mul_f32 v%d, v%d, v24"%(12+x,12+x))
    for r in (4,8):
        nop(1)
        for x in range(4): e("v_add_f32_dpp v%d, v%d, v%d row_ror:%d row_mask:0xf bank_mask:0xf"%(12+x,12+x,12+x,r))
    e("s_mov_b64 exec, s[56:57]"); e("ds_write_b128 v%d, v[12:15] offset:%d"%(R,L_T)); e("s_mov_b64 exec, -1")
    e("v_lshlrev_b32 v27, 16, v27")
    e("s_waitcnt lgkmcnt(0)"); e("s_barrier")
    e("s_cmp_lg_u32 s41, 0"); e("s_cbranch_scc1 L_end")
    for i in range(8): e("ds_read_b32 v%d, v%d offset:%d"%(12+i,R+1,L_T+64*i))
    e("s_waitcnt lgkmcnt(0)")
    e("v_pk_add_f32 v[12:13], v[12:13], v[14:15]"); e("v_pk_add_f32 v[16:17], v[16:17], v[18:19]")
    nop(0); e("v_pk_add_f32 v[12:13], v[12:13], v[16:17]"); nop(0); e("v_add_f32 v12, v12, v13")
    xrow(12,13)
    bf16r(12,12); e("v_add_f32 v12, v12, v27"); bf16r(12,12); e("v_or_b32 v12, 1, v12")
    e("buffer_store_dword v12, v%d, s[28:31], 0 offen sc1"%(R+2))
    e("s_branch L_end")
def xrow(v,t,only32=False):
    if not only32:
        e("v_mov_b32 v%d, v%d"%(t,v)); nop(1); e("v_permlane16_swap_b32 v%d, v%d"%(v,t)); nop(1); e("v_add_f32 v%d, v%d, v%d"%(v,v,t))
    e("v_mov_b32 v%d, v%d"%(t,v)); nop(1); e("v_permlane32_swap_b32 v%d, v%d"%(v,t)); nop(1); e("v_add_f32 v%d, v%d, v%d"%(v,v,t))
def ffn():
    g.lbl("L_ffn")
    e("s_cmp_ge_u32 s41, 5"); e("s_cbranch_scc1 L_ffn_idle0")
    e("s_sub_u32 s48, s2, 80")
    R=A2
    e("v_lshrrev_b32 v12, 5, v1"); e("v_and_b32 v13, 31, v1")
    e("v_mul_u32_u24 v9, 2560, v12"); e("v_lshl_add_u32 v9, v13, 4, v9"); e("s_lshl_b32 s3, s41, 9"); e("s_add_u32 s3, s3, %d"%W_H)
    e("v_add_u32 v%d, s3, v9"%R)
    e("v_lshlrev_b32 v%d, 3, v12"%(R+2)); e("s_lshl_b32 s3, s41, 4"); e("v_add_u32 v%d, s3, v%d"%(R+1,R+2))
    e("v_mul_u32_u24 v9, 1280, v12"); e("v_lshl_add_u32 v9, v13, 3, v9"); e("s_lshl_b32 s3, s41, 8"); e("v_add_u32 v%d, s3, v9"%(R+3))
    e("v_and_b32 v14, 1, v4"); e("v_lshrrev_b32 v15, 2, v4"); e("v_and_b32 v16, 3, v4")
    e("v_mul_u32_u24 v9, 1280, v14"); e("v_lshl_add_u32 v9, v15, 6, v9"); e("v_lshl_add_u32 v9, v3, 4, v9"); e("v_add_u32 v%d, s3, v9"%(R+4))
    e("v_cmp_eq_u32 s[56:57], v15, v3"); e("v_cmp_eq_u32 s[50:51], 1, v3")
    e("v_lshlrev_b32 v9, 8, v15"); e("v_lshl_add_u32 v9, v16, 5, v9"); e("s_lshl_b32 s3, s41, 10"); e("s_add_u32 s3, s3, %d"%L_T)
    e("v_add_u32 v%d, s3, v9"%(R+5))
    e("v_lshlrev_b32 v9, 2, v1"); e("v_add_u32 v%d, %d, v9"%(R+6,L_T))
    e("v_lshlrev_b32 v%d, 1, v1"%(R+7))
    e("v_lshlrev_b32 v9, 6, v14"); e("v_lshl_add_u32 v%d, v3, 4, v9"%(R+8))
    e("v_mul_u32_u24 v9, 20, v3"); e("v_add_u32 v9, v9, v15"); e("s_lshl_b32 s3, s41, 2")
    e("v_add_u32 v9, s3, v9"); e("v_mul_u32_u24 v9, 54, v9"); e("v_add_u32 v9, s48, v9"); e("v_lshlrev_b32 v9, 7, v9")
    e("v_lshl_add_u32 v9, v16, 5, v9"); e("v_add_u32 v9, %d, v9"%W_Z)
    e("v_cmp_gt_u32 vcc, 32, v1"); sel_oob(9); e("v_mov_b32 v%d, v9"%(R+9))
    e("s_mov_b32 s54, 0x80000000"); e("s_mov_b32 s55, 0x80000000")
    e("s_waitcnt vmcnt(0)"); preperm(A0,B0); preperm(A1,B1)
    o=A0
    poll(["buffer_load_dwordx4 %s, v%d, s[28:31], 0 offen sc1"%(rng(o,4),R)],[o,o+1,o+2,o+3])
    for v in range(o,o+4): e("v_and_b32 v%d, 0xffff0000, v%d"%(v,v))
    e("v_pk_mul_f32 v[12:13], %s, %s"%(rng(o,2),rng(o,2))); e("v_pk_add_f32 v[14:15], %s, %s"%(rng(o,2),rng(o+2,2)))
    e("v_pk_fma_f32 v[12:13], %s, %s, v[12:13]"%(rng(o+2,2),rng(o+2,2)))
    e("v_add_f32 v16, v14, v15"); e("v_add_f32 v17, v12, v13")
    for r in (8,4,2,1):
        nop(0)
        for v in (16,17): e("v_add_f32_dpp v%d, v%d, v%d row_ror:%d row_mask:0xf bank_mask:0xf"%(v,v,v,r))
    nop(0)
    for v in (16,17): e("v_add_f32_dpp v%d, v%d, v%d row_bcast:15 row_mask:0xa bank_mask:0xf"%(v,v,v))
    e("s_mov_b64 exec, s[54:55]"); e("ds_write_b64 v%d, v[16:17] offset:%d"%(R+1,L_YP)); e("s_mov_b64 exec, -1")
    e("s_waitcnt lgkmcnt(0)")
    g.lbl("L_ffn_idle0")
    e("s_barrier")
    e("s_cmp_ge_u32 s41, 5"); e("s_cbranch_scc1 L_ffn_idle")
    for i in range(5): e("ds_read_b64 v[%d:%d], v%d offset:%d"%(12+2*i,13+2*i,R+2,L_YP+16*i))
    e("s_waitcnt lgkmcnt(0)")
    e("v_pk_add_f32 v[12:13], v[12:13], v[14:15]"); e("v_pk_add_f32 v[16:17], v[16:17], v[18:19]")
    e("v_pk_add_f32 v[12:13], v[12:13], v[20:21]"); nop(0); e("v_pk_add_f32 v[12:13], v[12:13], v[16:17]")
    e("v_mul_f32 v13, 0x3acccccd, v13"); e("v_mul_f32 v12, 0x3acccccd, v12")
    e("v_fma_f32 v14, -v12, v12, v13"); e("v_max_f32 v14, 0, v14")
    bf16r(14,14); e("v_add_f32 v14, 0x3727c5ac, v14"); bf16r(14,14)
    e("v_sqrt_f32 v14, v14"); bf16r(13,12); bf16r(14,14)
    e("v_rcp_f32 v15, v14")
    for v in range(o,o+4): e("v_sub_f32 v%d, v%d, v13"%(v,v))
    for v in range(o,o+4): e("v_cvt_pk_bf16_f32 v%d, v%d, v%d"%(v,v,v))
    for v in range(o,o+4): e("v_and_b32 v%d, 0xffff0000, v%d"%(v,v))
    for k in range(4): e("v_mul_f32 v%d, v%d, v15"%(16+k,o+k))
    for k in range(4): e("v_fma_f32 v%d, -v%d, v14, v%d"%(20+k,16+k,o+k))
    for k in range(4): e("v_fma_f32 v%d, v%d, v15, v%d"%(o+k,20+k,16+k))
    e("v_cvt_pk_bf16_f32 v12, v%d, v%d"%(o,o+1)); e("v_cvt_pk_bf16_f32 v13, v%d, v%d"%(o+2,o+3))
    e("ds_write_b64 v%d, v[12:13] offset:%d"%(R+3,L_LN))
    e("s_waitcnt lgkmcnt(0)")
    e("ds_read_b128 v[24:27], v%d offset:%d"%(R+4,L_LN)); e("s_waitcnt lgkmcnt(0)")
    mfma_only(B0,24,DD)
    e("s_mov_b64 exec, s[56:57]")
    nop(4)
    for c in range(0,8,2):
        for b in range(2):
            e("ds_write2_b32 v%d, v%d, v%d offset0:%d offset1:%d"%(R+5,DD+4*c+b,DD+4*(c+1)+b,32*b+c,32*b+c+1))
    e("s_mov_b64 exec, -1"); e("s_waitcnt lgkmcnt(0)")
    g.lbl("L_ffn_idle")
    e("s_barrier")
    e("s_cmp_ge_u32 s41, 5"); e("s_cbranch_scc1 L_end")
    for i in range(10): e("ds_read2st64_b32 v[%d:%d], v%d offset0:%d offset1:%d"%(DD+2*i,DD+2*i+1,R+6,2*i,2*i+1))
    e("s_waitcnt lgkmcnt(0)")
    def pk(d,a,b): e("v_pk_add_f32 %s, %s, %s"%(rng(DD+2*d,2),rng(DD+2*a,2),rng(DD+2*b,2)))
    for i in range(5): pk(i,i,i+5)
    pk(0,0,1); pk(2,2,3); pk(0,0,4); nop(0); pk(0,0,2)
    e("v_add_f32 v%d, v%d, v%d"%(DD,DD,DD+1))
    e("v_max_f32 v%d, 0, v%d"%(DD,DD)); e("v_cvt_pk_bf16_f32 v12, v%d, v%d"%(DD,DD))
    e("ds_write_b16 v%d, v12 offset:%d"%(R+7,L_Q)); e("s_waitcnt lgkmcnt(0)")
    e("ds_read_b128 v[24:27], v%d offset:%d"%(R+8,L_Q)); e("s_waitcnt lgkmcnt(0)")
    mfma_only(B1,24,DD)
    nop(3)
    for c in range(8):
        e("v_cndmask_b32 v%d, v%d, v%d, s[50:51]"%(12+c,DD+4*c,DD+4*c+1))
        e("v_or_b32 v%d, 1, v%d"%(12+c,12+c))
        if c==3: e("buffer_store_dwordx4 v[12:15], v%d, s[28:31], 0 offen sc1"%(R+9))
    e("buffer_store_dwordx4 v[16:19], v%d, s[28:31], 0 offen offset:16 sc1"%(R+9))
    e("s_branch L_end")
def hopC():
    g.lbl("L_hopC")
    e("s_sub_u32 s48, s2, 134")
    e("s_mul_i32 s3, s48, 6912"); e("s_add_u32 s3, s3, %d"%W_Z); e("v_lshlrev_b32 v9, 4, v0"); e("v_add_u32 v9, s3, v9")
    e("v_cmp_gt_u32 vcc, 432, v0"); sel_oob(9)
    e("v_cmp_le_u32 vcc, 432, v0"); nop(1); e("v_cndmask_b32 v28, 0, 1, vcc")
    e("s_lshl_b32 s3, s48, 7"); e("s_add_u32 s3, s3, %d"%W_H); e("v_and_b32 v10, 31, v1"); e("v_lshl_add_u32 v10, v10, 2, s3")
    R=A2
    e("v_lshrrev_b32 v12, 4, v0"); e("v_lshlrev_b32 v12, 7, v12"); e("v_lshl_add_u32 v%d, v4, 4, v12"%R)
    e("v_cmp_gt_u32 s[56:57], 8, v4")
    e("v_lshrrev_b32 v12, 5, v1"); e("v_lshlrev_b32 v12, 11, v12"); e("v_and_b32 v13, 31, v1"); e("v_lshl_add_u32 v12, v13, 2, v12")
    e("v_add_u32 v%d, %d, v12"%(R+1,L_T)); e("v_add_u32 v%d, %d, v12"%(R+3,L_T+128))
    e("s_lshl_b32 s3, s48, 6"); e("v_lshlrev_b32 v12, 1, v13"); e("v_add_u32 v%d, s3, v12"%(R+2))
    poll(["buffer_load_dwordx4 v[12:15], v9, s[28:31], 0 offen sc1"],[12,13,14,15],28)
    e("buffer_load_dword v27, v10, s[28:31], 0 offen sc1")
    nop(1)
    for x in range(4): e("v_add_f32_dpp v%d, v%d, v%d row_ror:8 row_mask:0xf bank_mask:0xf"%(12+x,12+x,12+x))
    e("s_mov_b64 exec, s[56:57]"); e("ds_write_b128 v%d, v[12:15] offset:%d"%(R,L_T)); e("s_mov_b64 exec, -1")
    e("s_waitcnt lgkmcnt(0)"); e("s_barrier")
    e("s_cmp_lg_u32 s41, 0"); e("s_cbranch_scc1 L_end")
    for i in range(8): e("ds_read2st64_b32 v[%d:%d], v%d offset0:%d offset1:%d"%(DD+2*i,DD+2*i+1,R+1+2*(i&1),2*(i>>1),2*(i>>1)+1))
    e("s_waitcnt lgkmcnt(0)")
    def pk(d,a,b): e("v_pk_add_f32 %s, %s, %s"%(rng(DD+2*d,2),rng(DD+2*a,2),rng(DD+2*b,2)))
    for i in range(4): pk(i,i,i+4)
    pk(0,0,2); pk(1,1,3); nop(0); pk(0,0,1); nop(0)
    e("v_add_f32 v%d, v%d, v%d"%(DD,DD,DD+1))
    xrow(DD,DD+1,True)
    e("s_waitcnt vmcnt(0)")
    bf16r(DD,DD); e("v_and_b32 v27, 0xffff0000, v27"); e("v_add_f32 v%d, v%d, v27"%(DD,DD))
    e("v_cvt_pk_bf16_f32 v12, v%d, v%d"%(DD,DD))
    e("s_mov_b64 exec, 0xffffffff"); e("global_store_short v%d, v12, s[34:35]"%(R+2)); e("s_mov_b64 exec, -1")
HDR=open('cdna_kernels/%s.s.ref'%NAME).read().split("; @launch")[0]
def build(path):
    main()
    out=HDR+"; @launch grid=(256,1,1) block=(512,1,1) lds=%d\n"%L_SIZE
    out+='.amdgcn_target "amdgcn-amd-amdhsa--gfx950"\n.text\n.globl %s_kernel\n.p2align 8\n.type %s_kernel,@function\n%s_kernel:\n'%(NAME,NAME,NAME)
    out+="\n".join(g.L)+"\n"
    out+='.section .rodata,"a"\n.p2align 6\n.amdhsa_kernel %s_kernel\n  .amdhsa_next_free_vgpr 256\n  .amdhsa_next_free_sgpr 102\n  .amdhsa_accum_offset 256\n  .amdhsa_group_segment_fixed_size 0\n  .amdhsa_kernarg_size 88\n  .amdhsa_user_sgpr_count 2\n  .amdhsa_user_sgpr_kernarg_segment_ptr 1\n  .amdhsa_system_sgpr_workgroup_id_x 1\n.end_amdhsa_kernel\n'%NAME
    open(path,'w').write(out)
if __name__=="__main__":
    import sys
    build(sys.argv[1] if len(sys.argv)>1 else 'cdna_kernels/%s.s'%NAME)
```
